```python
import torch

def _softmax(x, axis=-1):
    return torch.softmax(x, dim=axis)

def _gelu(x):
    return torch.nn.functional.gelu(x, approximate='tanh')

def _silu(x):
    return torch.nn.functional.silu(x)

def _sigmoid(x):
    return torch.sigmoid(x)

def _layernorm(x, axis=-1, eps=1e-05):
    m = x.mean(dim=axis, keepdim=True)
    v = x.var(dim=axis, keepdim=True, unbiased=False)
    return (x - m) / torch.sqrt(v + eps)

def _scatter_add(tgt, idx, src, axis=0):
    return tgt.clone().index_add_(axis, idx, src)

def _segment_sum(src, seg, n):
    out = torch.zeros((n,) + src.shape[1:], dtype=src.dtype)
    return out.index_add_(0, seg, src)

def _pad(x, pw):
    flat = tuple((v for pair in reversed(pw) for v in pair))
    return torch.nn.functional.pad(x, flat)
kernel_name = 'recurrent_scan__memory_aug_recurrent_mem_tr__glu_gated_glu__prompt'

def setup_inputs():

    _w = lambda a: (lambda t: t.to(torch.bfloat16) if t.is_floating_point() else t)(torch.as_tensor(a))

    def _A_setup():
        B, S, Dm = (1, 2048, 448)
        H, Dh = (16, 256)
        M, seg = (8, 32)
        seg = min(seg, S)
        S = S // seg * seg
        return {'x': _w((lambda *s: torch.randn(*s, dtype=torch.bfloat16) * 0.05)(B, S, Dm)), 'mem0': _w((lambda *s: torch.randn(*s, dtype=torch.bfloat16) * 0.2)(B, M, Dm)), 'Wq': _w((lambda *s: torch.randn(*s, dtype=torch.bfloat16) * 0.8)(Dm, H, Dh) * Dm ** (-0.5)), 'Wk': _w((lambda *s: torch.randn(*s, dtype=torch.bfloat16) * 0.8)(Dm, H, Dh) * Dm ** (-0.5)), 'Wv': _w((lambda *s: torch.randn(*s, dtype=torch.bfloat16) * 0.2)(Dm, H, Dh) * Dm ** (-0.5)), 'Wo': _w((lambda *s: torch.randn(*s, dtype=torch.bfloat16) * 0.2)(H, Dh, Dm) * (H * Dh) ** (-0.5)), 'seg_len': seg}
    _A_in = _A_setup()

    def _B_setup():
        B, S, D, F = (1, 2048, 448, 1792)
        return {'x': _w((lambda *s: torch.randn(*s, dtype=torch.bfloat16) * 0.05)(B, S, D)), 'w_gate': _w((lambda *s: torch.randn(*s, dtype=torch.bfloat16) * 0.2)(D, F)), 'w_up': _w((lambda *s: torch.randn(*s, dtype=torch.bfloat16) * 0.1)(D, F)), 'w_down': _w((lambda *s: torch.randn(*s, dtype=torch.bfloat16) * 0.1)(F, D))}
    _B_in = _B_setup()
    return {'A_x': _A_in['x'], 'A_mem0': _A_in['mem0'], 'A_Wq': _A_in['Wq'], 'A_Wk': _A_in['Wk'], 'A_Wv': _A_in['Wv'], 'A_Wo': _A_in['Wo'], 'A_seg_len': _A_in['seg_len'], 'B_x': _B_in['x'], 'B_w_gate': _B_in['w_gate'], 'B_w_up': _B_in['w_up'], 'B_w_down': _B_in['w_down']}

def reference(A_x, A_mem0, A_Wq, A_Wk, A_Wv, A_Wo, A_seg_len, B_x, B_w_gate, B_w_up, B_w_down):

    def _A_ref(x, mem0, Wq, Wk, Wv, Wo, seg_len):
        B, S, Dm = x.shape
        H, Dh = (Wq.shape[1], Wq.shape[2])
        M = mem0.shape[1]
        scale = Dh ** (-0.5)
        n_seg = S // seg_len
        L = M + seg_len
        idx = torch.arange(L)
        mask = (idx[:, None] < M) | (idx[:, None] >= idx[None, :])
        mem = mem0
        outs = []
        for s in range(n_seg):
            xs = x[:, s * seg_len:(s + 1) * seg_len, :].clone()
            h = torch.concatenate([mem, xs], axis=1)
            q = torch.einsum('btd,dhe->bhte', h, Wq)
            k = torch.einsum('btd,dhe->bhte', h, Wk)
            v = torch.einsum('btd,dhe->bhte', h, Wv)
            scores = torch.einsum('bhqe,bhke->bhqk', q, k) * scale
            scores = torch.where(mask[None, None], scores, -1000000000.0)
            p = _softmax(scores, axis=-1)
            o = torch.einsum('bhqk,bhke->bhqe', p, v)
            o = torch.einsum('bhte,hed->btd', o, Wo)
            mem = o[:, :M, :].clone()
            outs.append(o[:, M:, :])
        return torch.concatenate(outs, axis=1)

    def _B_ref(x, w_gate, w_up, w_down):
        g = torch.einsum('bsd,df->bsf', x, w_gate)
        u = torch.einsum('bsd,df->bsf', x, w_up)
        h = _sigmoid(g) * u
        return torch.einsum('bsf,fd->bsd', h, w_down)
    x = A_x
    xn = _layernorm(x, axis=-1)
    s = _A_ref(xn, A_mem0, A_Wq, A_Wk, A_Wv, A_Wo, A_seg_len)
    g = _silu(_B_ref(xn, B_w_gate, B_w_up, B_w_down))
    return x + s * g
```

```python
import re

def R(i, n=1):
    assert 0 <= i and i + n <= 512, (i, n)
    assert not (i < 256 < i + n), ("range straddles v/a", i, n)
    p, j = ('v', i) if i < 256 else ('a', i - 256)
    if n > 1:
        assert j % 2 == 0, ("unaligned tuple", i, n)
    return f"{p}{j}" if n == 1 else f"{p}[{j}:{j+n-1}]"

def S(i, n=1):
    if n > 1:
        assert i % (2 if n == 2 else 4) == 0, ("unaligned sgpr tuple", i, n)
    return f"s{i}" if n == 1 else f"s[{i}:{i+n-1}]"

class Prog:
    def __init__(self):
        self.lines = []
        self.uid = 0
    def __call__(self, text):
        for l in text.split("\n"):
            l = l.strip()
            if l:
                self.lines.append(l)
    def label(self, name):
        self.lines.append(name + ":")
    def newlabel(self, base):
        self.uid += 1
        return f"L_{base}_{self.uid}"
    def comment(self, c):
        self.lines.append("; " + c)

_reg_re = re.compile(r"^(-|abs\()?([vas])(\d+)\)?$")
_rng_re = re.compile(r"^(-|abs\()?([vas])\[(\d+):(\d+)\]\)?$")

def regs_of(op):
    op = op.strip()
    if op.startswith("-"): op = op[1:]
    if op.startswith("|") and op.endswith("|"): op = op[1:-1]
    m = _rng_re.match(op)
    if m: return {f"{m.group(2)}{k}" for k in range(int(m.group(3)), int(m.group(4)) + 1)}
    m = _reg_re.match(op)
    if m: return {f"{m.group(2)}{m.group(3)}"}
    if op in ("vcc", "vcc_lo", "vcc_hi"): return {"vcc"}
    if op in ("exec", "exec_lo", "exec_hi"): return {"exec"}
    if op == "m0": return {"m0"}
    return set()

TRANS = ("v_exp_f32", "v_log_f32", "v_rcp_f32", "v_rsq_f32", "v_sqrt_f32", "v_sin_f32", "v_cos_f32", "v_rcp_iflag_f32")

class Ins:
    __slots__ = ("text", "mn", "ops", "mods", "defs", "uses", "kind", "labels", "target", "A", "B", "C", "passes", "states",
                 "dpp", "wide_store_data", "cnt", "idx")
    def __init__(self, text):
        self.text = text
        body = text.split(";")[0].strip()
        p = body.split(None, 1)
        self.mn = mn = p[0]
        rest = p[1] if len(p) > 1 else ""
        ops = [o.strip() for o in rest.split(",")] if rest else []
        self.mods = ""
        if ops:
            q = ops[-1].split(None, 1)
            if len(q) > 1 and not mn.startswith("s_waitcnt"):
                ops[-1] = q[0]; self.mods = q[1]
        self.ops = ops
        self.labels = []
        self.target = None
        self.A = self.B = self.C = set()
        self.passes = 0
        self.states = 1
        self.wide_store_data = set()
        self.cnt = None
        base = mn
        for suf in ("_e32", "_e64", "_dpp", "_sdwa"):
            if base.endswith(suf): base = base[:-len(suf)]
        rs = [regs_of(o) for o in ops]
        U = lambda l: set().union(*l) if l else set()
        self.dpp = mn.endswith("_dpp") or "row_" in self.mods or "quad_perm" in self.mods
        defs, uses = set(), set()
        if mn.startswith("v_mfma") or mn.startswith("v_smfmac"):
            self.kind = "mfma"
            defs = rs[0]; self.A = rs[1]; self.B = rs[2]
            if mn.startswith("v_smfmac"):
                self.C = rs[0]; self.B = rs[2] | rs[3]
            else:
                self.C = rs[3]
            uses = self.A | self.B | self.C
            self.passes = 8 if "32x32" in mn else 4
            assert "x1_" not in mn and "f64" not in mn and not mn.endswith("f32_f32")
        elif mn.startswith("v_"):
            self.kind = "valu"
            if base.startswith("v_cmp"):
                assert not base.startswith("v_cmpx")
                defs = rs[0]; uses = U(rs[1:])
            elif base in ("v_add_co_u32", "v_sub_co_u32", "v_addc_co_u32", "v_subb_co_u32", "v_mad_u64_u32"):
                defs = rs[0] | rs[1]; uses = U(rs[2:])
            elif base.startswith("v_permlane") or base == "v_swap_b32":
                defs = rs[0] | rs[1]; uses = rs[0] | rs[1]
            elif base in ("v_fmac_f32", "v_writelane_b32", "v_pk_fmac_f16", "v_dot2c_f32_bf16"):
                defs = rs[0]; uses = U(rs)
            elif base == "v_nop":
                pass
            else:
                defs = rs[0]; uses = U(rs[1:])
                if self.dpp: uses |= rs[0]
            if base in TRANS: self.kind = "valu"
        elif mn.startswith("ds_"):
            self.kind = "ds"
            if mn.startswith("ds_read") or mn.startswith("ds_bpermute") or mn.startswith("ds_swizzle") or "_rtn" in mn:
                defs = rs[0]; uses = U(rs[1:])
            else:
                uses = U(rs)
            self.cnt = "lgkm"
        elif mn.startswith("global_") or mn.startswith("buffer_") or mn.startswith("flat_"):
            assert not mn.startswith("flat_")
            self.kind = "vmem"
            self.cnt = "vm"
            islds = "_lds_" in mn or re.search(r"\blds\b", self.mods) is not None
            if mn in ("buffer_wbl2", "buffer_inv"):
                pass
            elif islds:
                uses = U(rs) | {"m0"}
            elif "_load" in mn:
                defs = rs[0]; uses = U(rs[1:])
            elif "_store" in mn:
                uses = U(rs)
                if "x3" in mn or "x4" in mn:
                    self.wide_store_data = rs[1] if mn.startswith("global_") else rs[0]
            elif "_atomic" in mn:
                if "sc0" in self.mods.split():
                    if mn.startswith("global_"):
                        defs = rs[0]; uses = U(rs[1:])
                    else:
                        defs = rs[0]; uses = U(rs)
                else:
                    uses = U(rs)
            else:
                raise ValueError(text)
        elif mn.startswith("s_load") or mn.startswith("s_buffer_load") or mn in ("s_memtime", "s_memrealtime"):
            self.kind = "smem"; self.cnt = "smem"
            defs = rs[0]; uses = U(rs[1:])
        elif mn in ("s_branch",) or mn.startswith("s_cbranch"):
            self.kind = "branch"; self.target = ops[0]
            if "vcc" in mn: uses = {"vcc"}
            if "exec" in mn: uses = {"exec"}
        elif mn == "s_nop":
            self.kind = "nop"; self.states = int(ops[0], 0) + 1
        elif mn in ("s_waitcnt", "s_barrier", "s_endpgm", "s_sleep", "s_setprio"):
            self.kind = "ctl"
        elif mn.startswith("s_"):
            self.kind = "salu"
            if mn.startswith("s_cmp") or mn.startswith("s_bitcmp"):
                uses = U(rs)
            elif "saveexec" in mn:
                defs = rs[0] | {"exec"}; uses = U(rs[1:]) | {"exec"}
            elif mn in ("s_addk_i32", "s_mulk_i32"):
                defs = rs[0]; uses = rs[0]
            elif mn == "s_getreg_b32":
                defs = rs[0]
            else:
                defs = rs[0]; uses = U(rs[1:])
        else:
            raise ValueError("unknown instruction: " + text)
        self.defs, self.uses = defs, uses
    @property
    def base(self):
        b = self.mn
        for suf in ("_e32", "_e64", "_dpp", "_sdwa"):
            if b.endswith(suf): b = b[:-len(suf)]
        return b

def _vg(s): return {r for r in s if r[0] in "va" and r != "vcc"}
def _sg(s): return {r for r in s if r[0] == "s" or r == "vcc"}

def required(p, c):
    need = 0
    if p.kind == "valu":
        pv = _vg(p.defs); ps = _sg(p.defs)
        if pv:
            if c.kind == "mfma" and (pv & c.uses): need = max(need, 2)
            if c.kind == "valu":
                if c.base.startswith("v_permlane") and (pv & c.uses): need = max(need, 2)
                if c.dpp and (pv & c.uses): need = max(need, 2)
                if c.base in ("v_readlane_b32", "v_readfirstlane_b32") and (pv & c.uses): need = max(need, 1)
                if p.base in TRANS and c.base not in TRANS and (pv & c.uses): need = max(need, 1)
            if p.base in TRANS and c.kind in ("vmem", "ds") and (pv & c.uses): need = max(need, 1)
        if ps:
            if c.kind == "valu" and (ps & c.uses):
                need = max(need, 4 if c.base in ("v_readlane_b32", "v_writelane_b32") else 2)
            if c.kind == "vmem" and (ps & c.uses): need = max(need, 5)
            if c.kind in ("salu", "smem") and (ps & c.uses): need = max(need, 1)
    elif p.kind == "mfma":
        D = p.defs
        big = p.passes == 8
        if c.kind == "mfma":
            if D & (c.A | c.B): need = max(need, 12 if big else 8)
            if D & c.C:
                same = (D == c.C) and (p.passes == c.passes)
                if not same: need = max(need, 10 if big else 6)
            if (D & c.defs) and not (D & c.C):
                need = max(need, 10 if big else 6)
        elif c.kind == "valu":
            if D & (c.uses | c.defs): need = max(need, 12 if big else 8)
            if p.C & c.defs: need = max(need, 7 if big else 3)
        elif c.kind in ("vmem", "ds"):
            if D & (c.uses | c.defs): need = max(need, 12 if big else 8)
            if p.C & c.defs: need = max(need, 7 if big else 3)
    elif p.kind == "vmem":
        if p.wide_store_data & c.defs:
            need = max(need, 2 if c.kind in ("valu", "mfma") else 1)
    elif p.kind == "salu":
        if "m0" in p.defs and "m0" in c.uses and c.kind in ("vmem", "ds"): need = max(need, 1)
    return need

def parse(lines):
    ins = []; pend = []; passthru = []
    for l in lines:
        s = l.split(";")[0].strip()
        if not s:
            continue
        if s.endswith(":") and " " not in s:
            pend.append(s[:-1]); continue
        if s.startswith("."):
            i = Ins("s_nop 0"); i.text = l; i.kind = "directive"; i.states = 0
        else:
            i = Ins(l)
        i.labels = pend; pend = []
        ins.append(i)
    assert not pend, "trailing label needs an instruction"
    return ins

def cfg(ins):
    lab = {}
    for k, i in enumerate(ins):
        i.idx = k
        for l in i.labels:
            assert l not in lab, "duplicate label " + l
            lab[l] = k
    preds = [[] for _ in ins]; succs = [[] for _ in ins]
    for k, i in enumerate(ins):
        if i.kind == "branch":
            t = lab[i.target]
            preds[t].append(k); succs[k].append(t)
        if not (i.mn in ("s_branch", "s_endpgm")) and k + 1 < len(ins):
            preds[k + 1].append(k); succs[k].append(k + 1)
    return preds, succs

MAXD = 12
def insert_nops(ins):
    preds, _ = cfg(ins)
    extra = [0] * len(ins)
    total = 0
    interesting = ("valu", "mfma", "vmem", "ds", "salu", "smem")
    for k, c in enumerate(ins):
        if c.kind not in interesting: continue
        need = 0
        best = {}
        stack = [(p, 0) for p in preds[k]]
        while stack:
            p, d = stack.pop()
            if p in best and best[p] <= d: continue
            best[p] = d
            pi = ins[p]
            r = required(pi, c)
            if r - d > need: need = r - d
            nd = d + pi.states + extra[p]
            if nd < MAXD:
                for q in preds[p]: stack.append((q, nd))
        extra[k] = need; total += need
    out = []
    for k, i in enumerate(ins):
        for l in i.labels: out.append(l + ":")
        n = extra[k]
        while n > 0:
            m = min(n, 16); out.append(f"  s_nop {m-1}"); n -= m
        out.append("  " + i.text)
    return out, total

_wc = re.compile(r"(vmcnt|lgkmcnt|expcnt)\((\d+)\)")
def lint_waitcnt(ins):
    preds, succs = cfg(ins)
    n = len(ins)
    state = [None] * n
    state[0] = ({}, {}, False)
    work = [0]; errs = {}
    def merge(a, b):
        if a is None: return b, True
        ch = False
        out = []
        for x, y in ((a[0], b[0]), (a[1], b[1])):
            z = dict(x)
            for r, v in y.items():
                if r not in z or v < z[r]: z[r] = v; ch = True
            out.append(z)
        f = a[2] or b[2]
        if f != a[2]: ch = True
        return (out[0], out[1], f), ch
    while work:
        k = work.pop()
        i = ins[k]
        vm, lg, sm = state[k]
        touched = i.uses | i.defs
        bad = touched & (set(vm) | set(lg))
        if i.kind == "vmem" and "_load" in i.mn:
            bad = (i.uses & (set(vm) | set(lg))) | (i.defs & set(lg))
        if i.kind == "ds" and i.defs:
            bad = (i.uses & (set(vm) | set(lg))) | (i.defs & set(vm))
        if bad: errs[k] = (i.text, sorted(bad))
        vm = dict(vm); lg = dict(lg)
        if i.mn == "s_waitcnt":
            for nm, v in _wc.findall(i.text):
                v = int(v)
                if nm == "vmcnt": vm = {r: a for r, a in vm.items() if a < v}
                if nm == "lgkmcnt":
                    if v == 0: lg = {}; sm = False
                    elif not sm: lg = {r: a for r, a in lg.items() if a < v}
        elif i.cnt == "vm":
            vm = {r: min(a + 1, 64) for r, a in vm.items()}
            for r in i.defs: vm[r] = 0
        elif i.cnt == "lgkm":
            lg = {r: min(a + 1, 16) for r, a in lg.items()}
            for r in i.defs: lg[r] = 0
        elif i.cnt == "smem":
            sm = True
            for r in i.defs: lg[r] = -1000
        for s in succs[k]:
            m, ch = merge(state[s], (vm, lg, sm))
            if ch: state[s] = m; work.append(s)
    return [(k,) + v for k, v in sorted(errs.items())]

def finalize(prog, name="kernel"):
    ins = parse(prog.lines)
    errs = lint_waitcnt(ins)
    for e in errs[:30]: print(f"LINT[{name}] missing wait:", e)
    out, total = insert_nops(ins)
    return out, dict(n=len(ins), nops=total, lint=len(errs))
```

```python
from asmlib import *
from layout import *

from common import SRD, sW, sROLE
POLL_LIMIT = 400000
OPT = {}

def lane_fields(p, vlane, vn, vg):
    p(f"v_and_b32 {R(vn)}, 15, {R(vlane)}")
    p(f"v_lshrrev_b32 {R(vg)}, 4, {R(vlane)}")

LD = {4: "buffer_load_dwordx4", 2: "buffer_load_dwordx2", 1: "buffer_load_dword"}
def poll(p, loads, soff, tmp, scnt, fail, spec=None, back=0):
    L = p.newlabel("poll")
    p(f"s_mov_b32 {S(scnt)}, 0")
    if back:
        L0 = p.newlabel("pollin"); p(f"s_branch {L0}")
        p.label(L); p(f"s_sleep {back}"); p.label(L0)
    else:
        p.label(L)
    for r, n, va, imm in loads:
        p(f"{LD[n]} {R(r, n)}, {R(va)}, {SRD}, {S(soff)} offen offset:{imm} {OPT.get('pollmod', 'sc1')}")
    p(f"s_add_u32 {S(scnt)}, {S(scnt)}, 1")
    p(f"s_cmp_gt_u32 {S(scnt)}, {POLL_LIMIT}")
    p(f"s_cbranch_scc1 {fail}")
    regs = [r for r, n, va, imm in loads]
    if OPT.get('fullcheck'): regs = [r + k for r, n, va, imm in loads for k in range(n)]
    spec = list(spec or [])
    if spec and len(loads) == 2 and len(spec) == 2:
        p("s_waitcnt vmcnt(1)"); p(spec[0]); p("s_waitcnt vmcnt(0)"); p(spec[1])
    else:
        p("s_waitcnt vmcnt(0)")
        for i in spec: p(i)
    if len(regs) == 1:
        p(f"v_cmp_eq_u32 vcc, -1, {R(regs[0])}")
    else:
        cur, rest = regs[0], regs[1:]
        while rest:
            if len(rest) >= 2:
                p(f"v_max3_u32 {R(tmp)}, {R(cur)}, {R(rest[0])}, {R(rest[1])}"); rest = rest[2:]
            else:
                p(f"v_max_u32 {R(tmp)}, {R(cur)}, {R(rest[0])}"); rest = []
            cur = tmp
        p(f"v_cmp_eq_u32 vcc, -1, {R(tmp)}")
    p(f"s_cbranch_vccnz {L}")

def check(p, regs, tmp):
    if len(regs) == 1:
        p(f"v_cmp_eq_u32 vcc, -1, {R(regs[0])}"); return
    cur, rest = regs[0], regs[1:]
    while rest:
        if len(rest) >= 2:
            p(f"v_max3_u32 {R(tmp)}, {R(cur)}, {R(rest[0])}, {R(rest[1])}"); rest = rest[2:]
        else:
            p(f"v_max_u32 {R(tmp)}, {R(cur)}, {R(rest[0])}"); rest = []
        cur = tmp
    p(f"v_cmp_eq_u32 vcc, -1, {R(tmp)}")

def poll2(p, setA, setB, soff, tmp, scnt, fail, okA):
    def issue(ls):
        for r, n, va, imm in ls:
            p(f"{LD[n]} {R(r, n)}, {R(va)}, {SRD}, {S(soff)} offen offset:{imm} sc1")
    L = p.newlabel("poll")
    nl = len(setA)
    p(f"s_mov_b32 {S(scnt)}, 0")
    issue(setA)
    if OPT.get('pgap'): p(f"s_nop {OPT['pgap']}"); p(f"s_nop {OPT['pgap']}")
    p.label(L)
    issue(setB)
    p(f"s_add_u32 {S(scnt)}, {S(scnt)}, 1")
    p(f"s_waitcnt vmcnt({nl})")
    check(p, [r for r, n, va, imm in setA], tmp)
    p(f"s_cbranch_vccz {okA}")
    issue(setA)
    p(f"s_cmp_gt_u32 {S(scnt)}, {POLL_LIMIT}")
    p(f"s_cbranch_scc1 {fail}")
    p(f"s_waitcnt vmcnt({nl})")
    check(p, [r for r, n, va, imm in setB], tmp)
    p(f"s_cbranch_vccnz {L}")

def gather_mem(p, C, fail):
    w3, go = p.newlabel("gw3"), p.newlabel("ggo")
    p(f"s_cmp_eq_u32 {S(sW)}, 3")
    p(f"s_cbranch_scc1 {w3}")
    poll(p, [(C.GA, 4, C.vG0, 0), (C.GA + 4, 4, C.vG1, 0)], C.sMEM, C.t0, C.sCNT, fail,
         [f"ds_write_b128 {R(C.vG0)}, {R(C.GA, 4)}", f"ds_write_b128 {R(C.vG1)}, {R(C.GA + 4, 4)}"], back=OPT.get('bm', 0))
    p(f"s_branch {go}") if False else None
    tail = p.newlabel("gtail")
    p.label(go)
    p("s_waitcnt lgkmcnt(0)")
    return w3, go

def gather_mem_w3(p, C, fail, w3, go):
    p.label(w3)
    poll(p, [(C.GA, 4, C.vG0, 0)], C.sMEM, C.t0, C.sCNT, fail, [f"ds_write_b128 {R(C.vG0)}, {R(C.GA, 4)}"], back=OPT.get('bm', 0))
    p(f"s_branch {go}")

XORD = (0, 4, 1, 2, 3, 5, 6)
def chunk_of(p, k, shift):
    p(f"s_add_u32 s30, {S(sW)}, {k}")
    p(f"s_sub_u32 s31, s30, 7")
    p(f"s_cmp_ge_u32 s30, 7")
    p(f"s_cselect_b32 s30, s31, s30")
    p(f"s_lshl_b32 s30, s30, {shift}")
def chunk_addrs(p, C):
    p(f"v_add_u32 {R(C.vG1W)}, 4096, {R(C.vG0)}")
    for dst, k in ((C.vG1, 4), (C.vR5, 5), (C.vR6, 6)):
        chunk_of(p, k, 10)
        p(f"v_add_u32 {R(dst)}, s30, {R(C.vL16)}")
def staged_reads(C):
    MO = C.MO
    return [f"ds_read_b128 {R(MO + 8, 4)}, {R(C.vG0)} offset:1024", f"ds_read_b128 {R(MO + 12, 4)}, {R(C.vG0)} offset:2048",
            f"ds_read_b128 {R(MO + 16, 4)}, {R(C.vG0)} offset:3072", f"ds_read_b128 {R(MO + 20, 4)}, {R(C.vR5)}",
            f"ds_read_b128 {R(MO + 24, 4)}, {R(C.vR6)}"]

def load_weights(p, regs, soff_sgpr, vl16):
    for f, r in enumerate(regs):
        for hf in range(2):
            oo = f * 2048 + hf * 1024
            if oo % 4096 == 0: p(f"s_add_u32 s30, {S(soff_sgpr)}, {oo}")
            p(f"buffer_load_dwordx4 {R(r + 4 * hf, 4)}, {R(vl16)}, {SRD}, s30 offen offset:{oo % 4096} sc1")

def sparse_index(p, vlane, idx, a, b):
    p(f"v_and_b32 {R(a)}, 8, {R(vlane)}")
    p(f"v_mov_b32 {R(idx)}, 0x44444444")
    p(f"v_mov_b32 {R(b)}, 0xeeeeeeee")
    p(f"v_cmp_ne_u32 vcc, 0, {R(a)}")
    p(f"v_cndmask_b32 {R(idx)}, {R(idx)}, {R(b)}, vcc")

def half_sum(a, b):
    return [f"v_permlane32_swap_b32 {R(a + r)}, {R(b + r)}" for r in range(4)] + \
           [f"v_pk_add_f32 {R(a + r, 2)}, {R(a + r, 2)}, {R(b + r, 2)}" for r in (0, 2)]

def allreduce32(p, op, m, t):
    for rot in (8, 4, 2, 1):
        p(f"{op}_dpp {R(m)}, {R(m)}, {R(m)} row_ror:{rot} row_mask:0xf bank_mask:0xf")
    p(f"v_mov_b32 {R(t)}, {R(m)}")
    p(f"v_permlane16_swap_b32 {R(m)}, {R(t)}")
    p(f"{op} {R(m)}, {R(m)}, {R(t)}")

class XR:
    MO = 0; TA = 28; TK = 56; MK = 84; GA = 84; IDX = 100
    vG0 = 101; vG1 = 102; vL16 = 103; vMK = 104; vMKL = 105; SEL = 106
    vSR = 110; vPO = 111; vSW2 = 112; vSW = 113; t0 = 114; t1 = 115; t2 = 116; t3 = 117; vKL = 98
    vG1W = 99; vR5 = 118; vR6 = 119; GB = 84
    RS = 208
    LDS_MEMS = 0; LDS_SP = 8192; LDS_K = 15360; LDS_END = 15360 + 4 * 7168
    @staticmethod
    def W(t, jc):
        f = 7 * t + jc
        return 256 + 8 * f if f < 32 else 120 + 8 * (f - 32)
    @staticmethod
    def key(kap, pp):
        if pp < 3: return XR.TK + 4 * (3 * kap + pp)
        return XR.TK + 24 + 2 * kap
    sMEM = 16; sPX = 17; sK0 = 18; sKM = 19; sSTEP = 20; sCNT = 24; sWB = 25; sHI = 22

def x_setup(p, vlane):
    X = XR
    n, g, a, b = X.t0, X.t1, X.t2, X.t3
    lane_fields(p, vlane, n, g)
    p(f"v_lshlrev_b32 {R(X.vL16)}, 4, {R(vlane)}")
    p(f"s_lshl_b32 s30, {S(sW)}, 10")
    p(f"v_add_u32 {R(X.vG0)}, s30, {R(X.vL16)}")
    chunk_addrs(p, X)
    sparse_index(p, vlane, X.IDX, a, b)
    p(f"v_lshrrev_b32 {R(a)}, 2, {R(n)}")
    p(f"v_and_b32 {R(b)}, 1, {R(n)}")
    p(f"v_lshl_add_u32 {R(a)}, {R(a)}, 1, {R(b)}")
    p(f"v_lshlrev_b32 {R(a)}, 4, {R(a)}")
    p(f"s_mul_i32 s30, {S(sW)}, {14 * 128}")
    p(f"v_add_u32 {R(a)}, s30, {R(a)}")
    p(f"v_lshl_add_u32 {R(X.vMK)}, {R(g)}, 7, {R(a)}")
    p(f"v_lshrrev_b32 {R(b)}, 1, {R(g)}")
    p(f"v_lshl_add_u32 {R(a)}, {R(b)}, 7, {R(a)}")
    p(f"v_and_b32 {R(b)}, 1, {R(g)}")
    p(f"v_lshl_add_u32 {R(a)}, {R(b)}, 3, {R(a)}")
    p(f"v_add_u32 {R(X.vMKL)}, {12 * 128}, {R(a)}")
    p(f"v_lshrrev_b32 {R(a)}, 2, {R(n)}")
    p(f"v_xor_b32 {R(a)}, {R(a)}, {R(g)}")
    p(f"v_and_b32 {R(a)}, 1, {R(a)}")
    p(f"v_lshrrev_b32 {R(b)}, 3, {R(n)}")
    p(f"v_lshlrev_b32 {R(b)}, 1, {R(b)}")
    p(f"v_bfe_u32 v0, {R(n)}, 1, 1")
    p(f"v_add_u32 {R(b)}, {R(b)}, v0")
    p(f"v_lshl_add_u32 {R(b)}, {R(a)}, 2, {R(b)}")
    p(f"v_and_b32 v0, 1, {R(n)}")
    p(f"v_lshlrev_b32 v0, 4, v0")
    p(f"v_mov_b32 v1, 0x3f80")
    p(f"v_lshlrev_b32 v0, v0, v1")
    for u in range(4):
        p(f"v_cmp_eq_u32 vcc, {u}, {R(b)}")
        p(f"v_cndmask_b32 {R(X.SEL + u)}, 0, v0, vcc")
    p(f"s_mul_i32 s30, {S(sW)}, 7168")
    p(f"s_add_u32 {S(X.sKM)}, s30, {X.LDS_K}")
    p(f"v_add_u32 {R(X.vKL)}, {S(X.sKM)}, {R(X.vL16)}")
    p(f"s_mul_i32 s30, {S(sW)}, {8 * X.RS}")
    p(f"s_add_u32 s30, s30, {X.LDS_SP}")
    p(f"v_and_b32 {R(a)}, 7, {R(n)}")
    p(f"v_mul_u32_u24 {R(a)}, {X.RS}, {R(a)}")
    p(f"v_add_u32 {R(a)}, s30, {R(a)}")
    p(f"v_lshrrev_b32 {R(b)}, 3, {R(n)}")
    p(f"v_lshl_add_u32 {R(X.vSW)}, {R(b)}, 6, {R(a)}")
    p(f"v_lshl_add_u32 {R(X.vSW)}, {R(g)}, 4, {R(X.vSW)}")
    p(f"v_mul_u32_u24 {R(b)}, 48, {R(b)}")
    p(f"v_add_u32 {R(a)}, {R(a)}, {R(b)}")
    p(f"v_lshl_add_u32 {R(a)}, {R(g)}, 3, {R(a)}")
    p(f"v_add_u32 {R(X.vSW2)}, 128, {R(a)}")
    p(f"v_and_b32 {R(a)}, 7, {R(n)}")
    p(f"v_mul_u32_u24 {R(a)}, {X.RS}, {R(a)}")
    p(f"v_add_u32 {R(a)}, s30, {R(a)}")
    p(f"v_mov_b32 v0, 0xff800000")
    p(f"v_mov_b32 v1, 0xff800000")
    p(f"ds_write_b64 {R(a)}, v[0:1] offset:160")
    e, i = n, g
    p(f"v_and_b32 {R(e)}, 31, {R(vlane)}")
    p(f"v_lshrrev_b32 {R(i)}, 5, {R(vlane)}")
    p(f"s_lshl_b32 s31, {S(sW)}, 1")
    p(f"v_add_u32 {R(i)}, s31, {R(i)}")
    p(f"v_mul_u32_u24 {R(a)}, {X.RS}, {R(i)}")
    p(f"v_min_u32 {R(b)}, 20, {R(e)}")
    p(f"v_lshl_add_u32 {R(a)}, {R(b)}, 3, {R(a)}")
    p(f"v_add_u32 {R(X.vSR)}, {X.LDS_SP}, {R(a)}")
    p(f"v_lshrrev_b32 {R(a)}, 2, {R(e)}")
    p(f"v_lshlrev_b32 {R(a)}, 7, {R(a)}")
    p(f"v_lshl_add_u32 {R(a)}, {R(i)}, 4, {R(a)}")
    p(f"v_and_b32 {R(b)}, 3, {R(e)}")
    p(f"v_lshl_add_u32 {R(a)}, {R(b)}, 2, {R(a)}")
    p(f"s_lshl_b32 s30, {S(sROLE)}, 9")
    p(f"v_add_u32 {R(X.vPO)}, s30, {R(a)}")
    p(f"s_lshr_b32 s30, {S(sROLE)}, 2")
    p(f"s_lshl_b32 s30, s30, 9")
    p(f"s_and_b32 s31, {S(sROLE)}, 1")
    p(f"s_lshl_b32 s31, s31, 8")
    p(f"s_add_u32 s30, s30, s31")
    p(f"s_lshr_b32 s31, {S(sROLE)}, 1")
    p(f"s_and_b32 s31, s31, 1")
    p(f"s_lshl_b32 s31, s31, 6")
    p(f"s_add_u32 s30, s30, s31")
    p(f"s_add_u32 s30, s30, 8192")
    p(f"v_lshrrev_b32 {R(a)}, 1, {R(e)}")
    p(f"v_and_b32 {R(a)}, 1, {R(a)}")
    p(f"v_lshlrev_b32 {R(a)}, 7, {R(a)}")
    p(f"v_lshl_add_u32 {R(a)}, {R(i)}, 3, {R(a)}")
    p(f"v_and_b32 {R(b)}, 1, {R(e)}")
    p(f"v_lshl_add_u32 {R(a)}, {R(b)}, 2, {R(a)}")
    p(f"v_add_u32 {R(a)}, s30, {R(a)}")
    p(f"v_cmp_le_u32 vcc, 16, {R(e)}")
    p(f"v_cndmask_b32 {R(X.vPO)}, {R(X.vPO)}, {R(a)}, vcc")
    p(f"v_mov_b32 {R(a)}, 0x80000000")
    p(f"v_cmp_le_u32 vcc, 20, {R(e)}")
    p(f"v_cndmask_b32 {R(X.vPO)}, {R(X.vPO)}, {R(a)}, vcc")
    p(f"s_mov_b32 {S(X.sMEM)}, {OFF_MEM}")
    p(f"s_mov_b32 {S(X.sPX)}, {OFF_PX}")
    p(f"s_mul_i32 s30, {S(sW)}, 7168")
    p(f"s_add_u32 {S(X.sK0)}, s30, {OFF_XK}")
    p(f"s_mov_b32 {S(X.sSTEP)}, 0")
    p(f"s_mov_b32 {S(X.sHI)}, 0xff00ff00")
    p(f"s_mov_b32 {S(X.sHI + 1)}, 0xff00ff00")

def x_load_weights(p):
    X = XR
    p(f"s_mul_i32 s31, {S(sROLE)}, {28 * 14336}")
    p(f"s_mul_i32 s30, {S(sW)}, {7 * 14336}")
    p(f"s_add_u32 s31, s31, s30")
    p(f"s_add_u32 {S(X.sWB)}, s31, {OFF_F}")
    for sg, k in enumerate(XORD):
        chunk_of(p, k, 11)
        p(f"s_add_u32 s29, s30, {S(X.sWB)}")
        for t in range(7):
            if t: p(f"s_add_u32 s29, s29, 14336")
            for hf in range(2):
                p(f"buffer_load_dwordx4 {R(X.W(t, sg) + 4 * hf, 4)}, {R(X.vL16)}, {SRD}, s29 offen offset:{hf * 1024} sc1")

def x_keys_dma(p):
    X = XR
    if OPT.get('no_keys'): return []
    out = [f"s_mov_b32 m0, {S(X.sKM)}", f"s_add_u32 s30, {S(X.sK0)}, 4096"]
    for f in range(4): out.append(f"buffer_load_dwordx4 {R(X.vL16)}, {SRD}, {S(X.sK0)} offen offset:{f * 1024} sc1 lds")
    out += [f"s_add_u32 m0, {S(X.sKM)}, 4096", f"s_add_u32 {S(X.sK0)}, {S(X.sK0)}, {4 * 7168}"]
    for f in range(3): out.append(f"buffer_load_dwordx4 {R(X.vL16)}, {SRD}, s30 offen offset:{f * 1024} sc1 lds")
    return out
def x_keys_read(p):
    X = XR
    for f in range(7):
        p(f"ds_read_b128 {R(X.TK + 4 * f, 4)}, {R(X.vKL)} offset:{f * 1024}")

def role_X(p, fail, stamp=None, nsteps=63):
    X = XR
    MO, TA, MK = X.MO, X.TA, X.MK
    st = stamp or (lambda p, k: None)
    for i in x_keys_dma(p): p(i)
    for r in range(28): p(f"v_mov_b32 {R(TA + r)}, 0")
    p("s_waitcnt vmcnt(0)")
    x_keys_read(p)
    LOOP = p.newlabel("xloop"); p.label(LOOP)
    def smf(t, sg, a=None):
        a = MO + 4 * sg if a is None else a
        return f"v_smfmac_f32_16x16x64_bf16 {R(TA + 4 * t, 4)}, {R(a, 4)}, {R(X.W(t, sg), 8)}, {R(X.IDX)}"
    def wr(g): return [f"ds_write_b128 {R(X.vG0)}, {R(g, 4)}", f"ds_write_b128 {R(X.vG1W)}, {R(g + 4, 4)}"]
    rd = staged_reads(X)
    kbar = OPT.get('kbar', 5)
    def head(g, written):
        st(p, 6)
        if not written:
            for i in wr(g): p(i)
        for t in range(7):
            p(smf(t, 0, g))
            if t == kbar:
                p("s_waitcnt lgkmcnt(0)"); p("s_barrier")
                st(p, 7)
                p(rd[0])
            elif t > kbar and t - kbar < 5 and t - kbar <= 6 - kbar: p(rd[t - kbar])
        rest = rd[7 - kbar:]
        for t in range(7):
            p(smf(t, 1, g + 4))
            if rest: p(rest.pop(0))
    loadsA = [(MO, 4, X.vG0, 0), (MO + 4, 4, X.vG1, 0)]
    if OPT.get('xp', 1) == 1:
        spec = OPT.get('spec', 1)
        poll(p, loadsA, X.sMEM, X.t0, X.sCNT, fail, wr(MO) if spec else None, back=OPT.get('bx', 0))
        head(MO, spec)
        ool = None
    else:
        okA, join = p.newlabel("xokA"), p.newlabel("xjoin")
        poll2(p, loadsA, [(X.GB, 4, X.vG0, 0), (X.GB + 4, 4, X.vG1, 0)], X.sMEM, X.t0, X.sCNT, fail, okA)
        head(X.GB, False)
        p.label(join)
        def ool(p):
            p.label(okA); head(MO, False); p(f"s_branch {join}")
    st(p, 8)
    dma = x_keys_dma(p)
    if not OPT.get('no_touch'):
        dma.append(f"s_add_u32 s31, {S(X.sPX)}, {PX_STRIDE}")
        dma.append(f"buffer_load_dword {R(X.t1)}, {R(X.vPO)}, {SRD}, s31 offen offset:0 sc1")
    fill = {k: [] for k in range(14, 49)}
    def cvt(d, a): return f"v_cvt_pk_bf16_f32 {R(d)}, {R(a)}, {R(a + 1)}"
    def pair_pre(pp):
        a, b = TA + 8 * pp, TA + 8 * pp + 4
        return [cvt(a, a), cvt(a + 1, a + 2), cvt(a + 2, b), cvt(a + 3, b + 2)]
    def pair_tr(pp):
        a, b = TA + 8 * pp, TA + 8 * pp + 4
        return f"v_mfma_f32_16x16x32_bf16 {R(b, 4)}, {R(a, 4)}, {R(X.SEL, 4)}, 0"
    def pair_post(pp):
        a, b = TA + 8 * pp, TA + 8 * pp + 4
        return [cvt(a, b), cvt(a + 1, b + 2)] + \
               [f"v_mov_b32_dpp {R(a + 2 + r)}, {R(a + r)} row_ror:8 row_mask:0xf bank_mask:0xf" for r in range(2)]
    kk = OPT.get('kpos', 14); step = OPT.get('kstep', 4)
    for i in dma:
        fill[kk].append(i)
        if i.startswith("buffer"): kk += step
    if OPT.get('xp', 1) == 2: fill[19] += ["s_waitcnt vmcnt(%d)" % sum(1 for k in range(14, 20) for i in fill[k] if i.startswith("buffer"))]
    fill[19] += [f"ds_read_b128 {R(MK, 4)}, {R(X.vMK)}"]
    fill[20] += [f"ds_read_b128 {R(MK + 4, 4)}, {R(X.vMK)} offset:512"]
    fill[21] += [f"ds_read_b128 {R(MK + 8, 4)}, {R(X.vMK)} offset:1024"]
    fill[22] += [f"ds_read_b64 {R(MK + 12, 2)}, {R(X.vMKL)}"]
    pre0, pre1, pre2 = pair_pre(0), pair_pre(1), pair_pre(2)
    pst0, pst1, pst2 = pair_post(0), pair_post(1), pair_post(2)
    for k, i in ((24, pre0[0]), (25, pre0[1]), (28, pre0[2]), (29, pre0[3]), (31, pair_tr(0)),
                 (34, pre1[0]), (35, pre1[1]), (37, pst0[0]), (38, pst0[1]), (39, pre1[2]), (40, pre1[3]),
                 (41, pst0[2]), (42, pst0[3]), (42, pair_tr(1)), (44, pre2[0]), (45, pre2[1]),
                 (47, pre2[2]), (48, pre2[3])):
        fill[k].append(i)
    for k in range(14, 49):
        t, sg = divmod(k - 14, 5)
        if t == 0: p(f"s_waitcnt lgkmcnt({4 - sg})")
        p(smf(t, sg + 2))
        for i in fill[k]: p(i)
        if k == 18: st(p, 9)
        if k == 41: st(p, 10)
    st(p, 3)
    t6 = TA + 24
    SA = MO + 16
    def smm(kap, pp, first=False):
        key = X.key(kap, pp) if kap < 2 else MK + 4 * pp
        c = "0" if first else R(SA + 4 * kap, 4)
        if pp < 3: return f"v_mfma_f32_16x16x32_bf16 {R(SA + 4 * kap, 4)}, {R(key, 4)}, {R(TA + 8 * pp, 4)}, {c}"
        return f"v_mfma_f32_16x16x16_bf16 {R(SA + 4 * kap, 4)}, {R(key, 2)}, {R(t6, 2)}, {c}"
    p("s_waitcnt lgkmcnt(0)")
    p(smm(0, 0, True))
    p(pair_tr(2))
    p(pst1[0]); p(pst1[1])
    p(smm(1, 0, True))
    p(pst1[2]); p(pst1[3])
    p(smm(2, 0, True))
    p(cvt(t6, t6)); p(cvt(t6 + 1, t6 + 2))
    p(smm(0, 1))
    p(f"v_mfma_f32_16x16x16_bf16 {R(MO, 4)}, {R(t6, 2)}, {R(X.SEL, 2)}, 0")
    p(pst2[0]); p(pst2[1])
    p(smm(1, 1))
    p(pst2[2]); p(pst2[3])
    p(smm(2, 1))
    p(smm(0, 2)); p(smm(1, 2))
    p(cvt(t6, MO)); p(cvt(t6 + 1, MO + 2))
    p(smm(2, 2))
    p(smm(2, 3)); p(smm(0, 3)); p(smm(1, 3))
    st(p, 4)
    p(f"ds_write_b64 {R(X.vSW2)}, {R(SA + 8, 2)}")
    for r in range(4):
        p(f"v_mov_b32_dpp {R(SA + r)}, {R(SA + 4 + r)} row_ror:8 row_mask:0xf bank_mask:0xc")
    p(f"ds_write_b128 {R(X.vSW)}, {R(SA, 4)}")
    p("s_waitcnt lgkmcnt(0)")
    st(p, 5)
    p("s_barrier")
    st(p, 1)
    V = TA
    for w2 in range(4):
        p(f"ds_read_b64 {R(V + 2 * w2, 2)}, {R(X.vSR)} offset:{w2 * 8 * X.RS}")
    m, t = TA + 8, TA + 9
    p("s_waitcnt lgkmcnt(2)")
    p(f"v_pk_add_f32 {R(V, 2)}, {R(V, 2)}, {R(V + 2, 2)}")
    p("s_waitcnt lgkmcnt(0)")
    p(f"v_pk_add_f32 {R(V + 4, 2)}, {R(V + 4, 2)}, {R(V + 6, 2)}")
    p(f"v_pk_add_f32 {R(V, 2)}, {R(V, 2)}, {R(V + 4, 2)}")
    st(p, 11)
    p(f"v_max_f32 {R(m)}, {R(V)}, {R(V + 1)}")
    allreduce32(p, "v_max_f32", m, t)
    for r in range(2): p(f"v_sub_f32 {R(V + r)}, {R(V + r)}, {R(m)}")
    for r in range(2): p(f"v_exp_f32 {R(V + r)}, {R(V + r)}")
    p(f"v_add_f32 {R(m)}, {R(V)}, {R(V + 1)}")
    allreduce32(p, "v_add_f32", m, t)
    p(f"v_rcp_f32 {R(m)}, {R(m)}")
    for r in range(2): p(f"v_mul_f32 {R(V + r)}, {R(V + r)}, {R(m)}")
    p(f"v_cvt_pk_bf16_f32 {R(V + 4)}, {R(V)}, {R(V + 1)}")
    p(f"v_min_u32 {R(V + 4)}, -2, {R(V + 4)}")
    p(f"buffer_store_dword {R(V + 4)}, {R(X.vPO)}, {SRD}, {S(X.sPX)} offen")
    st(p, 2)
    p(f"s_add_u32 {S(X.sMEM)}, {S(X.sMEM)}, {MEM_STRIDE}")
    p(f"s_add_u32 {S(X.sPX)}, {S(X.sPX)}, {PX_STRIDE}")
    p(f"s_add_u32 {S(X.sSTEP)}, {S(X.sSTEP)}, 1")
    p("s_waitcnt vmcnt(1)")
    x_keys_read(p)
    for r in range(28): p(f"v_mov_b32 {R(TA + r)}, 0")
    if OPT.get('xsleep'): p(f"s_sleep {OPT['xsleep']}")
    p(f"s_cmp_lt_u32 {S(X.sSTEP)}, {nsteps}")
    p(f"s_cbranch_scc1 {LOOP}")
    return ool or (lambda p: None)

class YR:
    MO = 0; UA = 28; VX = 76; UF = 108; PA = 116; OA = 136; IDX = 160
    RING = (60, 68, 144, 152)
    vG0 = 161; vG1 = 162; vL16 = 163; vWL = 164; vP1 = 165; vP2 = 166; vYW = 167; vYR = 168; vMO = 169
    vG1W = 170; t0 = 171; t1 = 172; t2 = 173; t3 = 174; MP = 176; vFL = 178; FL = 180; vR5 = 182; vR6 = 183; TCH = 184
    LDS_MEMS = 0; LDS_YP = 8192; LDS_W = 13312; LDS_END = 13312 + 131072
    LDSS = (3, 5)
    @staticmethod
    def W(t, sg):
        if sg in YR.LDSS: return None
        f = 5 * t + [0, 1, 2, None, 3, None, 4][sg]
        return 256 + 8 * f if f < 32 else 192 + 8 * (f - 32)
    @staticmethod
    def lds_slot(t, sg): return 2 * t + YR.LDSS.index(sg)
    sMEM = 16; sPX = 17; sVX = 18; sUF = 19; sSTEP = 20; sMW = 21; sCNT = 24; sWB = 25; sMN = 26; sUFP = 27

def y_setup(p, vlane):
    Y = YR
    n, g, a, b = Y.t0, Y.t1, Y.t2, Y.t3
    lane_fields(p, vlane, n, g)
    p(f"v_lshlrev_b32 {R(Y.vL16)}, 4, {R(vlane)}")
    p(f"s_lshl_b32 s30, {S(sW)}, 10")
    p(f"v_add_u32 {R(Y.vG0)}, s30, {R(Y.vL16)}")
    chunk_addrs(p, Y)
    sparse_index(p, vlane, Y.IDX, a, b)
    p(f"s_lshl_b32 s30, {S(sW)}, 15")
    p(f"s_add_u32 s30, s30, {Y.LDS_W}")
    p(f"v_add_u32 {R(Y.vWL)}, s30, {R(Y.vL16)}")
    p(f"s_lshl_b32 s30, {S(sW)}, 11")
    p(f"v_add_u32 {R(Y.vP1)}, s30, {R(Y.vL16)}")
    p(f"s_lshl_b32 s30, {S(sW)}, 9")
    p(f"s_add_u32 s30, s30, 8192")
    p(f"v_lshlrev_b32 {R(a)}, 3, {R(vlane)}")
    p(f"v_add_u32 {R(Y.vP2)}, s30, {R(a)}")
    p(f"v_and_b32 {R(a)}, 1, {R(g)}")
    p(f"v_mul_u32_u24 {R(a)}, {4 * 144}, {R(a)}")
    p(f"v_lshrrev_b32 {R(b)}, 1, {R(g)}")
    p(f"v_lshl_add_u32 {R(b)}, {R(b)}, 4, {R(n)}")
    p(f"v_lshl_add_u32 {R(a)}, {R(b)}, 2, {R(a)}")
    p(f"s_mul_i32 s30, {S(sW)}, {8 * 144}")
    p(f"s_add_u32 s30, s30, {Y.LDS_YP}")
    p(f"v_add_u32 {R(Y.vYW)}, s30, {R(a)}")
    p(f"s_and_b32 s31, {S(sW)}, 1")
    p(f"s_lshl_b32 s31, s31, 6")
    p(f"v_add_u32 {R(n)}, s31, {R(vlane)}")
    p(f"v_lshrrev_b32 {R(a)}, 2, {R(n)}")
    p(f"v_and_b32 {R(a)}, 7, {R(a)}")
    p(f"v_mul_u32_u24 {R(a)}, 144, {R(a)}")
    p(f"v_lshrrev_b32 {R(b)}, 5, {R(n)}")
    p(f"v_lshl_add_u32 {R(a)}, {R(b)}, 5, {R(a)}")
    p(f"v_and_b32 {R(b)}, 3, {R(n)}")
    p(f"v_lshl_add_u32 {R(a)}, {R(b)}, 3, {R(a)}")
    p(f"v_add_u32 {R(Y.vYR)}, {Y.LDS_YP}, {R(a)}")
    p(f"s_lshl_b32 s30, {S(sROLE)}, 9")
    p(f"v_lshlrev_b32 {R(a)}, 2, {R(n)}")
    p(f"s_cmp_lt_u32 {S(sW)}, 2")
    p(f"s_cselect_b32 s30, s30, 0x80000000")
    p(f"v_add_u32 {R(Y.vMO)}, s30, {R(a)}")
    p(f"s_mov_b32 {S(Y.sMEM)}, {OFF_MEM}")
    p(f"s_mov_b32 {S(Y.sMN)}, {OFF_MEM + MEM_STRIDE}")
    p(f"s_mov_b32 {S(Y.sMW)}, {OFF_MEMW}")
    p(f"s_mov_b32 {S(Y.sUFP)}, 0xf0000000")
    p(f"s_mov_b32 {S(Y.sPX)}, {OFF_PX}")
    p(f"s_mul_i32 s30, {S(sW)}, {4 * 28}")
    p(f"s_lshl_b32 s31, {S(sROLE)}, 1")
    p(f"s_add_u32 s30, s30, s31")
    p(f"s_lshl_b32 s30, s30, 10")
    p(f"s_add_u32 {S(Y.sVX)}, s30, {OFF_VX}")
    p(f"s_lshl_b32 s30, {S(sROLE)}, 2")
    p(f"s_add_u32 s30, s30, {S(sW)}")
    p(f"s_lshl_b32 s30, s30, 11")
    p(f"s_add_u32 {S(Y.sUF)}, s30, {OFF_UF}")
    p(f"s_mov_b32 {S(Y.sSTEP)}, 0")

def y_load_weights(p):
    Y = YR
    p(f"s_lshl_b32 s30, {S(sW)}, 2")
    p(f"s_add_u32 s30, s30, 16")
    p(f"s_mul_i32 s30, s30, 28")
    p(f"s_lshl_b32 s31, {S(sROLE)}, 1")
    p(f"s_add_u32 s30, s30, s31")
    p(f"s_mul_i32 s30, s30, 14336")
    p(f"s_add_u32 {S(Y.sWB)}, s30, {OFF_F}")
    def tile_loads(sg, dst):
        chunk_of(p, XORD[sg], 11)
        p(f"s_add_u32 s29, s30, {S(Y.sWB)}")
        for t in range(8):
            p(f"s_add_u32 s30, s29, {((t >> 1) * 28 + (t & 1)) * 14336}")
            for hf in range(2):
                p(f"buffer_load_dwordx4 {R(dst(t) + 4 * hf, 4)}, {R(Y.vL16)}, {SRD}, s30 offen offset:{hf * 1024} sc1")
    for q, sg in enumerate(Y.LDSS): tile_loads(sg, lambda t: 64 * q + 8 * t)
    regsl = [sg for sg in range(7) if sg not in Y.LDSS]
    for q, sg in enumerate(regsl):
        tile_loads(sg, lambda t: Y.W(t, sg))
        if q == 1:
            p("s_waitcnt vmcnt(32)")
            for q2, s2 in enumerate(Y.LDSS):
                for t in range(8):
                    for h2 in range(2):
                        p(f"ds_write_b128 {R(Y.vWL)}, {R(64 * q2 + 8 * t + 4 * h2, 4)} offset:{Y.lds_slot(t, s2) * 2048 + h2 * 1024}")

def y_vx_loads():
    Y = YR
    out = []
    if OPT.get('no_vx'): return out
    for hh in range(4):
        if hh == 0: so = S(Y.sVX)
        else:
            out.append(f"s_add_u32 s30, {S(Y.sVX)}, {hh * 28672}"); so = "s30"
        for ct in range(2):
            r = Y.VX + ((hh >> 1) * 2 + ct) * 8 + (hh & 1) * 4
            out.append(f"buffer_load_dwordx4 {R(r, 4)}, {R(Y.vL16)}, {SRD}, {so} offen offset:{1024 * ct} sc1")
    return out

def role_Y(p, fail, stamp=None, nsteps=63, hooks=None):
    Y = YR
    hooks = hooks or {}
    st = stamp or (lambda p, k: None)
    MO, UA, VX = Y.MO, Y.UA, Y.VX
    order = [0, 2, 4, 6, 1, 3, 5, 7]
    lds_seq = [(t, sg) for t in order for sg in Y.LDSS]
    NR = len(Y.RING)
    def ringread(i):
        t, sg = lds_seq[i]; r = Y.RING[i % NR]; o = Y.lds_slot(t, sg) * 2048
        return [f"ds_read_b128 {R(r, 4)}, {R(Y.vWL)} offset:{o}", f"ds_read_b128 {R(r + 4, 4)}, {R(Y.vWL)} offset:{o + 1024}"]
    def prepare():
        for i in range(NR):
            for x in ringread(i): p(x)
        for r in range(32): p(f"v_mov_b32 {R(UA + r)}, 0")
        for r in range(8): p(f"v_mov_b32 {R(Y.OA + r)}, 0")
    if OPT.get('vxmode', 0) == 2:
        for i in y_vx_loads(): p(i)
    prepare()
    LOOP = p.newlabel("yloop"); DONE = p.newlabel("ydone"); p.label(LOOP)
    def smf(t, a, w): return f"v_smfmac_f32_16x16x64_bf16 {R(UA + 4 * t, 4)}, {R(a, 4)}, {R(w, 8)}, {R(Y.IDX)}"
    wr = [f"ds_write_b128 {R(Y.vG0)}, {R(MO, 4)}", f"ds_write_b128 {R(Y.vG1W)}, {R(MO + 4, 4)}"]
    poll(p, [(MO, 4, Y.vG0, 0), (MO + 4, 4, Y.vG1, 0)], Y.sMEM, Y.t0, Y.sCNT, fail, wr, back=OPT.get('bm', 0))
    st(p, 3)
    ufst, mwst = [], []
    if not OPT.get('no_uf'):
        for ct in range(2):
            ufst.append(f"buffer_store_dwordx4 {R(Y.UF + 4 * ct, 4)}, {R(Y.vL16)}, {SRD}, {S(Y.sUFP)} offen offset:{1024 * ct} sc1")
        mwst.append(f"buffer_store_dword {R(Y.MP)}, {R(Y.vMO)}, {SRD}, {S(Y.sMW)} offen sc1")
    vxmode = OPT.get('vxmode', 0)
    if vxmode == 0: slow = ufst + y_vx_loads() + mwst
    elif vxmode == 1: slow = y_vx_loads() + ufst + mwst
    else: slow = ufst + mwst
    slow += hooks.get('early', [])
    def upost(ct, pr):
        a, b = UA + 4 * (4 * pr + ct), UA + 4 * (4 * pr + 2 + ct)
        return half_sum(a, b) + [f"v_cvt_pk_bf16_f32 {R(Y.UF + 4 * ct + pr)}, {R(a)}, {R(a + 1)}",
                                 f"v_cvt_pk_bf16_f32 {R(Y.UF + 4 * ct + 2 + pr)}, {R(a + 2)}, {R(a + 3)}"]
    rd = staged_reads(Y)
    seq = [(t, 0) for t in order] + [(t, 1) for t in order] + [(t, sg) for t in order for sg in range(2, 7)]
    li = 0; nxt = 1; ystep = OPT.get('ystep', 3)
    pend = []; lg = []
    def need(tag):
        if tag in lg:
            k = len(lg) - 1 - lg.index(tag)
            p(f"s_waitcnt lgkmcnt({k})"); del lg[:len(lg) - k]
    for k, (t, sg) in enumerate(seq):
        if sg in Y.LDSS:
            need(('r', li)); w = Y.RING[li % NR]
        else:
            w = Y.W(t, sg)
        if sg >= 2: need(('m', sg))
        p(smf(t, MO + 4 * sg, w))
        if k == 5:
            p("s_waitcnt lgkmcnt(0)"); p("s_barrier"); st(p, 4)
        if 5 <= k < 10:
            p(rd[k - 5]); lg.append(('m', k - 3))
        elif sg in Y.LDSS:
            if li + NR < len(lds_seq):
                for i in ringread(li + NR): p(i)
                lg += [None, ('r', li + NR)]
            li += 1
        elif slow and k >= nxt:
            while not slow[0].startswith("buffer"): p(slow.pop(0))
            p(slow.pop(0)); nxt = k + ystep
        elif pend:
            p(pend.pop(0))
        if k == 29:
            assert not any(x in slow for x in ufst)
            pend += upost(0, 0)
        if k == 39: pend += upost(0, 1)
        if k == 49: pend += upost(1, 0)
    assert not slow, slow
    for i in pend: p(i)
    st(p, 5)
    for i in upost(1, 1): p(i)
    p(f"s_cmp_eq_u32 {S(Y.sSTEP)}, {nsteps}")
    p(f"s_cbranch_scc1 {DONE}")
    st(p, 0)
    if OPT.get('ysleep_p'): p(f"s_sleep {OPT['ysleep_p']}")
    P = Y.PA
    def pl(P): return [(P, 4, Y.vP1, 0), (P + 4, 4, Y.vP1, 1024), (P + 8, 2, Y.vP2, 0)]
    def pz(P):
        for hp in range(2):
            for ct in range(2):
                p(f"v_smfmac_f32_16x16x64_bf16 {R(Y.OA + 4 * ct, 4)}, {R(P + 4 * hp, 4)}, {R(VX + (hp * 2 + ct) * 8, 8)}, {R(Y.IDX)}")
        for ct in range(2):
            p(f"v_smfmac_f32_16x16x32_bf16 {R(Y.OA + 4 * ct, 4)}, {R(P + 8, 2)}, {R(Y.UF + 4 * ct, 4)}, {R(Y.IDX)}")
    if OPT.get('yp', 1) == 1:
        poll(p, pl(P), Y.sPX, Y.t0, Y.sCNT, fail, back=OPT.get('bp', 0)); pz(P)
    else:
        okA, join = p.newlabel("ypA"), p.newlabel("ypJ")
        poll2(p, pl(P), pl(P + 10), Y.sPX, Y.t0, Y.sCNT, fail, okA); pz(P + 10)
        p(f"s_branch {join}"); p.label(okA); pz(P); p.label(join)
    st(p, 1)
    hs = half_sum(Y.OA, Y.OA + 4)
    for i in hs[:2] + hs[4:5]: p(i)
    p(f"ds_write2_b32 {R(Y.vYW)}, {R(Y.OA)}, {R(Y.OA + 1)} offset0:0 offset1:36")
    for i in hs[2:4] + hs[5:6]: p(i)
    p(f"ds_write2_b32 {R(Y.vYW)}, {R(Y.OA + 2)}, {R(Y.OA + 3)} offset0:72 offset1:108")
    p("s_waitcnt lgkmcnt(0)")
    st(p, 6)
    p("s_barrier")
    st(p, 7)
    skip = p.newlabel("yskip")
    p(f"s_cmp_lt_u32 {S(sW)}, 2")
    p(f"s_cbranch_scc0 {skip}")
    V = UA
    for w2 in range(4):
        p(f"ds_read_b64 {R(V + 2 * w2, 2)}, {R(Y.vYR)} offset:{w2 * 8 * 144}")
    p("s_waitcnt lgkmcnt(2)")
    p(f"v_pk_add_f32 {R(V, 2)}, {R(V, 2)}, {R(V + 2, 2)}")
    p("s_waitcnt lgkmcnt(0)")
    p(f"v_pk_add_f32 {R(V + 4, 2)}, {R(V + 4, 2)}, {R(V + 6, 2)}")
    p(f"v_pk_add_f32 {R(V, 2)}, {R(V, 2)}, {R(V + 4, 2)}")
    p(f"v_cvt_pk_bf16_f32 {R(Y.MP)}, {R(V)}, {R(V + 1)}")
    p(f"v_min_u32 {R(Y.MP)}, -2, {R(Y.MP)}")
    p(f"buffer_store_dword {R(Y.MP)}, {R(Y.vMO)}, {SRD}, {S(Y.sMN)} offen")
    st(p, 2)
    p.label(skip)
    p(f"s_mov_b32 {S(Y.sUFP)}, {S(Y.sUF)}")
    p(f"s_add_u32 {S(Y.sMEM)}, {S(Y.sMEM)}, {MEM_STRIDE}")
    p(f"s_add_u32 {S(Y.sMN)}, {S(Y.sMN)}, {MEM_STRIDE}")
    p(f"s_add_u32 {S(Y.sMW)}, {S(Y.sMW)}, {MEM_STRIDE}")
    p(f"s_add_u32 {S(Y.sPX)}, {S(Y.sPX)}, {PX_STRIDE}")
    p(f"s_add_u32 {S(Y.sVX)}, {S(Y.sVX)}, {16 * 28672}")
    p(f"s_add_u32 {S(Y.sUF)}, {S(Y.sUF)}, {14 * 4 * 2048}")
    p(f"s_add_u32 {S(Y.sSTEP)}, {S(Y.sSTEP)}, 1")
    if 'late' in hooks: hooks['late'](p)
    if vxmode == 2:
        for i in y_vx_loads(): p(i)
    prepare()
    if OPT.get('ysleep_m'): p(f"s_sleep {OPT['ysleep_m']}")
    p(f"s_branch {LOOP}")
    p.label(DONE)
    for ct in range(2):
        p(f"buffer_store_dwordx4 {R(Y.UF + 4 * ct, 4)}, {R(Y.vL16)}, {SRD}, {S(Y.sUF)} offen offset:{1024 * ct} sc1")
    if 'tail' in hooks: hooks['tail'](p)
    return lambda p: None
```

```python
from asmlib import *
from layout import *
SRD = "s[4:7]"
sW, sROLE, sXCC, sRANK, sN, sNN = 8, 9, 10, 11, 12, 13
WAIT_LIMIT = 2000000
K_X, K_MEM0, K_WQ, K_WK, K_WV, K_WO, K_G, K_U, K_D, K_OUT, K_DBG, K_WS = 0, 8, 16, 24, 32, 40, 64, 72, 80, 88, 96, 104

def lane_id(p, v):
    p(f"v_mbcnt_lo_u32_b32 {R(v)}, -1, 0")
    p(f"v_mbcnt_hi_u32_b32 {R(v)}, -1, {R(v)}")

def make_srd(p, s, koff, nbytes):
    p(f"s_load_dwordx2 {S(s, 2)}, s[0:1], {koff}")
    p("s_waitcnt lgkmcnt(0)")
    p(f"s_and_b32 {S(s + 1)}, {S(s + 1)}, 0xffff")
    p(f"s_mov_b32 {S(s + 2)}, {nbytes}")
    p(f"s_mov_b32 {S(s + 3)}, 0x20000")

def wait_flags(p, vaddr, soff, nlanes, vt, fail, sleep=2, scnt=28, imm=0):
    L, L0 = p.newlabel("wf"), p.newlabel("wf0")
    if nlanes < 64:
        m = (1 << nlanes) - 1
        p(f"s_mov_b32 exec_lo, {hex(m & 0xffffffff)}"); p(f"s_mov_b32 exec_hi, {hex(m >> 32)}")
    p(f"s_mov_b32 {S(scnt)}, 0")
    p(f"s_branch {L0}")
    p.label(L)
    p(f"s_sleep {sleep}")
    p.label(L0)
    p(f"buffer_load_dwordx2 {R(vt, 2)}, {R(vaddr)}, {SRD}, {soff} offen offset:{imm} sc1")
    p(f"s_add_u32 {S(scnt)}, {S(scnt)}, 1")
    p(f"s_cmp_gt_u32 {S(scnt)}, {WAIT_LIMIT}")
    p(f"s_cbranch_scc1 {fail}")
    p("s_waitcnt vmcnt(0)")
    p(f"v_xor_b32 {R(vt)}, {S(sN)}, {R(vt)}")
    p(f"v_xor_b32 {R(vt + 1)}, {S(sNN)}, {R(vt + 1)}")
    p(f"v_or_b32 {R(vt)}, {R(vt)}, {R(vt + 1)}")
    p(f"v_cmp_ne_u32 vcc, 0, {R(vt)}")
    p(f"s_cbranch_vccnz {L}")
    if nlanes < 64: p("s_mov_b64 exec, -1")

def set_flag(p, soff, vt, imm=0):
    p(f"v_mov_b32 {R(vt)}, {S(sN)}")
    p(f"v_mov_b32 {R(vt + 1)}, {S(sNN)}")
    p(f"v_mov_b32 {R(vt + 2)}, 0")
    p("s_mov_b64 exec, 1")
    p(f"buffer_store_dwordx2 {R(vt, 2)}, {R(vt + 2)}, {SRD}, {soff} offen offset:{imm} sc1")
    p("s_mov_b64 exec, -1")

def prologue(p, END, FAIL):
    p(f"""
    s_cmp_ge_u32 s2, 256
    s_cbranch_scc1 {END}
    s_load_dwordx4 s[16:19], s[0:1], {K_DBG}
    s_getreg_b32 s{sXCC}, hwreg(HW_REG_XCC_ID)
    s_and_b32 s{sXCC}, s{sXCC}, 7
    v_lshrrev_b32 v1, 6, v0
    s_lshl_b32 s14, s{sXCC}, 5
    v_mov_b32 v2, s14
    v_readfirstlane_b32 s{sW}, v1
    v_mov_b32 v3, 1
    s_waitcnt lgkmcnt(0)
    s_mov_b32 s4, s18
    s_and_b32 s5, s19, 0xffff
    s_mov_b32 s6, {WS_BYTES}
    s_mov_b32 s7, 0x20000
    s_cmp_eq_u32 s{sW}, 0
    s_cbranch_scc0 L_pro_norank
    s_mov_b64 exec, 1
    global_atomic_add v3, v2, v3, s[16:17] sc0 sc1
    s_cmp_eq_u32 s2, 0
    s_cbranch_scc0 L_pro_noepoch
    v_mov_b32 v4, {OFF_EPOCH}
    buffer_load_dword v5, v4, {SRD}, 0 offen sc1
    s_waitcnt vmcnt(0)
    v_add_u32 v5, 1, v5
    v_max_u32 v5, 1, v5
    v_mov_b32 v6, 4
    global_store_dword v6, v5, s[16:17] sc1
    buffer_store_dword v5, v4, {SRD}, 0 offen sc1
L_pro_noepoch:
    s_waitcnt vmcnt(0)
    v_mov_b32 v2, 0
    ds_write_b32 v2, v3
    s_waitcnt lgkmcnt(0)
    s_mov_b64 exec, -1
L_pro_norank:
    s_barrier
    v_mov_b32 v2, 0
    ds_read_b32 v3, v2
    s_waitcnt lgkmcnt(0)
    v_readfirstlane_b32 s{sRANK}, v3
    s_barrier
    s_cmp_ge_u32 s{sRANK}, 32
    s_cbranch_scc1 {FAIL}
    """)

def get_epoch(p, FAIL, vt):
    L = p.newlabel("ep")
    p(f"s_load_dwordx2 s[14:15], s[0:1], {K_DBG}")
    p(f"v_mov_b32 {R(vt)}, 4")
    p("s_mov_b32 s28, 0")
    p("s_waitcnt lgkmcnt(0)")
    p.label(L)
    p(f"global_load_dword {R(vt + 1)}, {R(vt)}, s[14:15] sc1")
    p("s_add_u32 s28, s28, 1")
    p(f"s_cmp_gt_u32 s28, {WAIT_LIMIT}")
    p(f"s_cbranch_scc1 {FAIL}")
    p("s_waitcnt vmcnt(0)")
    p(f"v_readfirstlane_b32 s{sN}, {R(vt + 1)}")
    p(f"s_cmp_eq_u32 s{sN}, 0")
    p(f"s_cbranch_scc1 {L}")
    p(f"s_not_b32 s{sNN}, s{sN}")
```

```python
OFF_F    = 0x0000000
OFF_XK   = 0x0C40000
OFF_XNF  = 0x0E00000
OFF_VX   = 0x1000000
OFF_UF   = 0x2C00000
OFF_H1   = 0x3300000
OFF_GF   = 0x3A00000
OFF_PT   = 0x3C00000
OFF_MEM  = 0x3F00000
OFF_MEMW = 0x3F80000
OFF_PX   = 0x4000000
OFF_FLAG = 0x4100000
OFF_DBG  = 0x4200000
WS_BYTES = 268435456
MEM_STRIDE = 8192
PX_STRIDE = 10240
D, H, E, M, L, NSEG = 448, 16, 256, 8, 32, 64
import math, struct
def fbits(x): return struct.unpack("<I", struct.pack("<f", x))[0]
SM_SCALE = math.log2(math.e) / 16.0

def tokperm(tau, m):
    return 16 * (m >> 3) + 8 * ((m >> 1) & 1) + 4 * ((m >> 2) & 1) + 2 * tau + (m & 1)
def frag_d(jc, hf, g, u, b):
    return 64 * jc + 32 * hf + 16 * (g >> 1) + 8 * (u & 1) + 4 * (g & 1) + 2 * (u >> 1) + b
def a_col(nt, n):
    w, t = divmod(nt, 7)
    if t < 6: return 112 * w + 32 * (t >> 1) + 8 * (n >> 2) + 4 * (t & 1) + (n & 3)
    return 112 * w + 96 + n

FL_FF = OFF_FLAG + 0x00000
FL_LN = OFF_FLAG + 0x04000
FL_VX = OFF_FLAG + 0x08000
FL_PT = OFF_FLAG + 0x10000
FL_UF = OFF_FLAG + 0x18000
FL_H1 = OFF_FLAG + 0x20000
FL_GF = OFF_FLAG + 0x28000
FL_IN = OFF_FLAG + 0x30000
OFF_EPOCH = OFF_FLAG + 0x38000
PT_STRIDE = 40960
DBG_NONCE = 16 * 4 + 192
```

```python
from common import *

def fab(p, FAIL, DONE):
    sM, sCG, sH, sSCALE, sHC, sOUT, sBUF, sSRC = 16, 17, 18, 19, 20, 21, 22, 23
    SA, SB = 32, 36
    vSrc, vRd, vL16, vT = 8, 16, 20, 24
    OUT, ACC, AF, ST = 40, 64, 96, 128
    lane = 2
    isB, join = p.newlabel("fabB"), p.newlabel("fabJ")
    p(f"s_mul_i32 s30, {S(sRANK)}, 37")
    p(f"s_lshr_b32 s30, s30, 8")
    p(f"s_mul_i32 s31, s30, 7")
    p(f"s_sub_u32 {S(sCG)}, {S(sRANK)}, s31")
    p(f"s_lshl_b32 {S(sM)}, {S(sXCC)}, 2")
    p(f"s_add_u32 {S(sM)}, {S(sM)}, s30")
    p(f"s_and_b32 {S(sH)}, {S(sM)}, 15")
    lane_id(p, lane)
    p(f"v_lshlrev_b32 {R(vL16)}, 4, {R(lane)}")
    p(f"v_lshrrev_b32 v3, 5, {R(lane)}")
    p(f"v_and_b32 v4, 31, {R(lane)}")
    p(f"v_xor_b32 v4, v4, v3")
    p(f"v_lshlrev_b32 v4, 4, v4")
    p(f"v_lshl_add_u32 v4, v3, 13, v4")
    for i in range(8): p(f"v_xor_b32 {R(vSrc + i)}, {32 * i}, v4")
    p(f"v_and_b32 v3, 15, {R(lane)}")
    p(f"v_lshrrev_b32 v4, 4, {R(lane)}")
    p(f"v_xor_b32 v4, v4, v3")
    p(f"v_lshlrev_b32 v4, 4, v4")
    p(f"v_lshl_add_u32 v4, v3, 9, v4")
    for k in range(4): p(f"v_xor_b32 {R(vRd + k)}, {64 * k}, v4")
    p(f"s_lshl_b32 {S(sBUF)}, {S(sW)}, 14")
    def stream_dma(buf):
        p(f"s_lshl_b32 s30, {S(sHC)}, 18")
        p(f"s_lshl_b32 s31, {S(sH)}, 9")
        p(f"s_add_u32 s30, s30, s31")
        p(f"s_cmp_lt_u32 {S(sHC)}, 14")
        p(f"s_cselect_b32 {S(sSRC)}, s30, 0xf0000000")
        for i in range(16):
            dd = tokperm(i >> 3, 2 * (i & 7))
            p(f"s_add_u32 m0, {S(sBUF)}, {buf * 65536 + i * 1024}")
            p(f"s_add_u32 s30, {S(sSRC)}, {dd * 8192}")
            p(f"buffer_load_dwordx4 {R(vSrc + (i & 7))}, {S(SA, 4)}, s30 offen lds")
    p(f"s_cmp_ge_u32 {S(sM)}, 16")
    p(f"s_cbranch_scc1 {isB}")
    make_srd(p, SA, K_WQ, 448 * 8192); make_srd(p, SB, K_WK, 448 * 8192)
    p(f"s_mov_b32 {S(sSCALE)}, {fbits(SM_SCALE)}")
    p(f"s_lshl_b32 s29, {S(sCG)}, 2")
    p(f"s_add_u32 s29, s29, {S(sW)}")
    p(f"s_mul_i32 s30, s29, 37")
    p(f"s_lshr_b32 s30, s30, 8")
    p(f"s_mul_i32 s31, s30, 7")
    p(f"s_sub_u32 s29, s29, s31")
    p(f"s_mul_i32 s30, s30, 112")
    p(f"s_lshr_b32 s31, s29, 1")
    p(f"s_lshl_b32 s31, s31, 5")
    p(f"s_add_u32 s30, s30, s31")
    p(f"s_and_b32 s31, s29, 1")
    p(f"s_lshl_b32 s31, s31, 2")
    p(f"s_add_u32 s30, s30, s31")
    p(f"s_lshl_b32 s30, s30, 13")
    p(f"s_lshl_b32 s31, {S(sH)}, 9")
    p(f"s_add_u32 {S(sSRC)}, s30, s31")
    p(f"s_lshl_b32 s28, {S(sW)}, 13")
    for i in range(8):
        p(f"s_mov_b32 s31, {2 * i * 8192}")
        p(f"s_cmp_eq_u32 s29, 6")
        p(f"s_cselect_b32 s30, s31, {(8 * (i >> 1) + 2 * (i & 1)) * 8192}")
        p(f"s_add_u32 s30, s30, {S(sSRC)}")
        p(f"s_add_u32 m0, s28, {65536 + i * 1024}")
        p(f"buffer_load_dwordx4 {R(vSrc + i)}, {S(SB, 4)}, s30 offen lds")
    p(f"s_mov_b32 {S(sHC)}, {S(sW)}")
    stream_dma(0)
    p("s_waitcnt vmcnt(16)")
    p("s_barrier")
    for k in range(4): p(f"v_add_u32 {R(vT + k)}, 0x10000, {R(vRd + k)}")
    for nt in range(4):
        for ks in range(8):
            p(f"ds_read_b128 {R(ST + 32 * nt + 4 * ks, 4)}, {R(vT + (ks & 3))} offset:{nt * 8192 + (ks >> 2) * 256}")
    p(f"s_branch {join}")
    p.label(isB)
    make_srd(p, SA, K_WV, 448 * 8192); make_srd(p, SB, K_WO, 4096 * 896)
    p(f"s_mov_b32 {S(sSCALE)}, {fbits(1.0)}")
    p(f"v_lshrrev_b32 v3, 3, {R(lane)}")
    p(f"v_mul_u32_u24 v3, 896, v3")
    p(f"v_bfe_u32 v4, {R(lane)}, 4, 1")
    p(f"v_lshlrev_b32 v4, 1, v4")
    p(f"v_and_b32 v5, 7, {R(lane)}")
    p(f"v_xor_b32 v4, v4, v5")
    p(f"v_lshl_add_u32 {R(vT)}, v4, 4, v3")
    p(f"v_xor_b32 v4, 4, v4")
    p(f"v_lshl_add_u32 {R(vT + 1)}, v4, 4, v3")
    p(f"s_mul_i32 s30, {S(sH)}, {256 * 896}")
    p(f"s_lshl_b32 s31, {S(sCG)}, 7")
    p(f"s_add_u32 s30, s30, s31")
    p(f"s_mul_i32 s31, {S(sW)}, {64 * 896}")
    p(f"s_add_u32 {S(sSRC)}, s30, s31")
    p(f"s_lshl_b32 s28, {S(sW)}, 13")
    for i in range(8):
        p(f"s_add_u32 s30, {S(sSRC)}, {i * 8 * 896}")
        p(f"s_add_u32 m0, s28, {65536 + i * 1024}")
        p(f"buffer_load_dwordx4 {R(vT + (i & 1))}, {S(SB, 4)}, s30 offen lds")
    p(f"s_mov_b32 {S(sHC)}, {S(sW)}")
    stream_dma(0)
    p(f"v_and_b32 v3, 15, {R(lane)}")
    p(f"v_lshrrev_b32 v4, 4, {R(lane)}")
    p(f"v_lshrrev_b32 v5, 2, v3")
    p(f"v_lshl_add_u32 v6, v4, 3, v5")
    p(f"v_lshlrev_b32 v6, 7, v6")
    p(f"v_and_b32 v7, 1, v3")
    p(f"v_lshl_add_u32 v6, v7, 3, v6")
    p(f"v_add_u32 v6, 0x10000, v6")
    p(f"v_and_b32 v4, 1, v4")
    p(f"v_lshlrev_b32 v4, 2, v4")
    p(f"v_and_b32 v5, 2, v5")
    p(f"v_or_b32 v4, v4, v5")
    p(f"v_bfe_u32 v5, v3, 1, 1")
    p(f"v_xor_b32 v4, v4, v5")
    for nt in range(4):
        p(f"v_xor_b32 v5, {2 * nt}, v4")
        p(f"v_lshl_add_u32 {R(vT + 2 + nt)}, v5, 4, v6")
    p("s_waitcnt vmcnt(16)")
    p("s_barrier")
    for nt in range(4):
        for ks in range(8):
            for hf in range(2):
                p(f"ds_read_b64_tr_b16 {R(ST + 32 * nt + 4 * ks + 2 * hf, 2)}, {R(vT + 2 + nt)} offset:{ks * 4096 + hf * 512}")
    p.label(join)
    p("s_waitcnt lgkmcnt(0)")
    p("s_barrier")
    p(f"s_mul_i32 s30, {S(sM)}, 28")
    p(f"s_lshl_b32 s31, {S(sCG)}, 2")
    p(f"s_add_u32 s30, s30, s31")
    p(f"s_mul_i32 s30, s30, 14336")
    p(f"s_add_u32 {S(sOUT)}, s30, {OFF_F}")
    last = p.newlabel("fablast")
    for it in range(4):
        buf = it & 1
        if it < 3:
            p(f"s_add_u32 {S(sHC)}, {S(sHC)}, 4")
            stream_dma(buf ^ 1)
            p(f"s_waitcnt vmcnt({16 if it == 0 else 20})")
        else:
            p(f"s_cmp_ge_u32 {S(sW)}, 2")
            p(f"s_cbranch_scc1 {last}")
            p("s_waitcnt vmcnt(4)")
        for k in range(4): p(f"v_add_u32 {R(vT + k)}, {S(sBUF)}, {R(vRd + k)}")
        def rd(ks):
            for tau in range(2):
                p(f"ds_read_b128 {R(AF + 8 * (ks % 3) + 4 * tau, 4)}, {R(vT + (ks & 3))} offset:{tau * 8192 + (ks >> 2) * 256}")
        if buf:
            for k in range(4): p(f"v_add_u32 {R(vT + k)}, 0x10000, {R(vT + k)}")
        rd(0); rd(1)
        for ks in range(8):
            if ks + 2 < 8: rd(ks + 2)
            p(f"s_waitcnt lgkmcnt({min(4, 2 * (7 - ks))})")
            for nt in range(4):
                for tau in range(2):
                    a = ACC + 8 * nt + 4 * tau
                    c = "0" if ks == 0 else R(a, 4)
                    p(f"v_mfma_f32_16x16x32_bf16 {R(a, 4)}, {R(AF + 8 * (ks % 3) + 4 * tau, 4)}, {R(ST + 32 * nt + 4 * ks, 4)}, {c}")
        p(f"s_lshl_b32 s30, {S(sW)}, 10")
        p(f"s_add_u32 s30, s30, {S(sOUT)}")
        p(f"s_add_u32 s30, s30, {it * 4096}")
        for nt in range(4):
            a = ACC + 8 * nt
            for r in range(8): p(f"v_mul_f32 {R(a + r)}, {S(sSCALE)}, {R(a + r)}")
            for u in range(4): p(f"v_cvt_pk_bf16_f32 {R(OUT + 4 * nt + u)}, {R(a + 2 * u)}, {R(a + 2 * u + 1)}")
            if nt: p(f"s_add_u32 s30, s30, 14336")
            p(f"buffer_store_dwordx4 {R(OUT + 4 * nt, 4)}, {R(vL16)}, {SRD}, s30 offen sc1")
    p.label(last)
    get_epoch(p, FAIL, 4)
    p(f"s_lshl_b32 s30, {S(sM)}, 3")
    p(f"s_add_u32 s30, s30, {S(sCG)}")
    p(f"s_lshl_b32 s30, s30, 2")
    p(f"s_add_u32 s30, s30, {S(sW)}")
    p(f"s_lshl_b32 s30, s30, 3")
    p(f"s_add_u32 s30, s30, {FL_FF}")
    p("s_waitcnt vmcnt(0)")
    set_flag(p, "s30", 4)
    p(f"s_branch {DONE}")

def layernorm(p, FAIL, DONE):
    sU = 16
    SX = 32
    RS = 912
    lane, vG, vW, vL16 = 2, 3, 4, 5
    X0, D0, T = 16, 48, 110
    p(f"s_lshl_b32 {S(sU)}, {S(sXCC)}, 2")
    p(f"s_add_u32 {S(sU)}, {S(sU)}, {S(sRANK)}")
    p(f"s_sub_u32 {S(sU)}, {S(sU)}, 28")
    make_srd(p, SX, K_X, 2048 * 896)
    lane_id(p, lane)
    p(f"v_lshlrev_b32 {R(vL16)}, 4, {R(lane)}")
    p(f"v_lshrrev_b32 v6, 3, {R(lane)}")
    p(f"v_and_b32 v7, 7, {R(lane)}")
    p(f"v_mul_u32_u24 {R(vG)}, 896, v6")
    p(f"v_lshl_add_u32 {R(vG)}, v7, 4, {R(vG)}")
    p(f"v_mul_u32_u24 {R(vW)}, {RS}, v6")
    p(f"v_lshl_add_u32 {R(vW)}, v7, 4, {R(vW)}")
    p(f"s_mul_i32 s30, {S(sW)}, {16 * RS}")
    p(f"v_add_u32 {R(vW)}, s30, {R(vW)}")
    p(f"s_lshl_b32 s30, {S(sU)}, 2")
    p(f"s_add_u32 s30, s30, {S(sW)}")
    p(f"s_mul_i32 s29, s30, {16 * 896}")
    p(f"s_add_u32 s28, s29, {8 * 896}")
    XR = (X0, X0 + 112)
    for ps in range(2):
        for i in range(7):
            p(f"buffer_load_dwordx4 {R(XR[ps] + 4 * i, 4)}, {R(vG)}, {S(SX, 4)}, {'s29' if ps == 0 else 's28'} offen offset:{128 * i}")
    p(f"s_mov_b32 s20, {fbits(1.0 / 448)}")
    p(f"s_mov_b32 s21, {fbits(1e-5)}")
    p("s_mov_b32 s22, 0xffff0000")
    def red8(v):
        p(f"v_add_f32_dpp {R(v)}, {R(v)}, {R(v)} quad_perm:[1,0,3,2] row_mask:0xf bank_mask:0xf")
        p(f"v_add_f32_dpp {R(v)}, {R(v)}, {R(v)} quad_perm:[2,3,0,1] row_mask:0xf bank_mask:0xf")
        p(f"v_add_f32_dpp {R(v)}, {R(v)}, {R(v)} row_half_mirror row_mask:0xf bank_mask:0xf")
    def rbf(v):
        p(f"v_cvt_pk_bf16_f32 {R(v)}, {R(v)}, {R(v)}")
        p(f"v_and_b32 {R(v)}, s22, {R(v)}")
    for ps in range(2):
        X = XR[ps]
        p(f"s_waitcnt vmcnt({7 if ps == 0 else 0})")
        for k in range(28):
            p(f"v_lshlrev_b32 {R(D0 + 2 * k)}, 16, {R(X + k)}")
            p(f"v_and_b32 {R(D0 + 2 * k + 1)}, s22, {R(X + k)}")
        s0, s1, mean, mb, inv = T, T + 2, T + 4, T + 5, T + 6
        p(f"v_pk_add_f32 {R(s0, 2)}, {R(D0, 2)}, {R(D0 + 2, 2)}")
        p(f"v_pk_add_f32 {R(s1, 2)}, {R(D0 + 4, 2)}, {R(D0 + 6, 2)}")
        for k in range(4, 28):
            s = s0 if k % 2 == 0 else s1
            p(f"v_pk_add_f32 {R(s, 2)}, {R(s, 2)}, {R(D0 + 2 * k, 2)}")
        p(f"v_pk_add_f32 {R(s0, 2)}, {R(s0, 2)}, {R(s1, 2)}")
        p(f"v_add_f32 {R(mean)}, {R(s0)}, {R(s0 + 1)}")
        red8(mean)
        p(f"v_mul_f32 {R(mean)}, s20, {R(mean)}")
        q = T + 8
        for k in range(4): p(f"v_mov_b32 {R(s0 + k)}, 0")
        for k in range(56):
            p(f"v_sub_f32 {R(q + (k & 3))}, {R(D0 + k)}, {R(mean)}")
            p(f"v_fmac_f32 {R(s0 + (k & 3))}, {R(q + (k & 3))}, {R(q + (k & 3))}")
        p(f"v_pk_add_f32 {R(s0, 2)}, {R(s0, 2)}, {R(s1, 2)}")
        p(f"v_add_f32 {R(inv)}, {R(s0)}, {R(s0 + 1)}")
        red8(inv)
        p(f"v_mul_f32 {R(inv)}, s20, {R(inv)}")
        rbf(inv)
        p(f"v_add_f32 {R(inv)}, s21, {R(inv)}")
        rbf(inv)
        p(f"v_sqrt_f32 {R(inv)}, {R(inv)}")
        rbf(inv)
        p(f"v_rcp_f32 {R(inv)}, {R(inv)}")
        p(f"v_mov_b32 {R(mb)}, {R(mean)}")
        rbf(mb)
        for k in range(28):
            a = D0 + 2 * k
            p(f"v_sub_f32 {R(a)}, {R(a)}, {R(mb)}")
            p(f"v_sub_f32 {R(a + 1)}, {R(a + 1)}, {R(mb)}")
            p(f"v_cvt_pk_bf16_f32 {R(q)}, {R(a)}, {R(a + 1)}")
            p(f"v_lshlrev_b32 {R(a)}, 16, {R(q)}")
            p(f"v_and_b32 {R(a + 1)}, s22, {R(q)}")
            p(f"v_mul_f32 {R(a)}, {R(a)}, {R(inv)}")
            p(f"v_mul_f32 {R(a + 1)}, {R(a + 1)}, {R(inv)}")
            p(f"v_cvt_pk_bf16_f32 {R(X + k)}, {R(a)}, {R(a + 1)}")
        for i in range(7):
            p(f"ds_write_b128 {R(vW)}, {R(X + 4 * i, 4)} offset:{ps * 8 * RS + 128 * i}")
    p("s_waitcnt lgkmcnt(0)")
    p("s_barrier")
    n, g, a, b, c = 6, 7, 8, 9, 10
    p(f"v_and_b32 {R(n)}, 15, {R(lane)}")
    p(f"v_lshrrev_b32 {R(g)}, 4, {R(lane)}")
    p(f"s_lshr_b32 s20, {S(sW)}, 1")
    p(f"s_and_b32 s21, {S(sW)}, 1")
    p(f"s_mul_i32 s22, s20, {32 * RS}")
    p(f"s_lshl_b32 s23, {S(sU)}, 1")
    p(f"s_add_u32 s23, s23, s20")
    p(f"v_lshrrev_b32 {R(a)}, 3, {R(n)}")
    p(f"v_lshlrev_b32 {R(a)}, 4, {R(a)}")
    p(f"v_bfe_u32 {R(b)}, {R(n)}, 1, 1")
    p(f"v_lshl_add_u32 {R(a)}, {R(b)}, 3, {R(a)}")
    p(f"v_bfe_u32 {R(b)}, {R(n)}, 2, 1")
    p(f"v_lshl_add_u32 {R(a)}, {R(b)}, 2, {R(a)}")
    p(f"v_and_b32 {R(b)}, 1, {R(n)}")
    p(f"v_add_u32 {R(a)}, {R(a)}, {R(b)}")
    p(f"s_lshl_b32 s30, s21, 1")
    p(f"v_add_u32 {R(a)}, s30, {R(a)}")
    p(f"v_mul_u32_u24 {R(a)}, {RS}, {R(a)}")
    p(f"v_lshrrev_b32 {R(b)}, 1, {R(g)}")
    p(f"v_lshl_add_u32 {R(a)}, {R(b)}, 5, {R(a)}")
    p(f"v_and_b32 {R(b)}, 1, {R(g)}")
    p(f"v_lshl_add_u32 {R(a)}, {R(b)}, 3, {R(a)}")
    p(f"v_add_u32 {R(a)}, s22, {R(a)}")
    F0 = 16
    for ks in range(14):
        p(f"ds_read2_b32 {R(F0 + 4 * ks, 2)}, {R(a)} offset0:{16 * ks} offset1:{16 * ks + 4}")
        p(f"ds_read2_b32 {R(F0 + 4 * ks + 2, 2)}, {R(a)} offset0:{16 * ks + 1} offset1:{16 * ks + 5}")
    p(f"s_lshl_b32 s30, s21, 4")
    p(f"v_add_u32 {R(b)}, s30, {R(n)}")
    p(f"v_mul_u32_u24 {R(b)}, {RS}, {R(b)}")
    p(f"v_add_u32 {R(b)}, s22, {R(b)}")
    p(f"v_lshl_add_u32 {R(c)}, {R(g)}, 3, {R(b)}")
    p(f"v_lshl_add_u32 {R(b)}, {R(g)}, 4, {R(b)}")
    K0 = 80
    for w2 in range(4):
        for pp in range(3):
            p(f"ds_read_b128 {R(K0 + 14 * w2 + 4 * pp, 4)}, {R(b)} offset:{224 * w2 + 64 * pp}")
        p(f"ds_read_b64 {R(K0 + 14 * w2 + 12, 2)}, {R(c)} offset:{224 * w2 + 192}")
    p(f"s_lshl_b32 s30, s23, 1")
    p(f"s_add_u32 s30, s30, s21")
    p(f"s_mul_i32 s30, s30, 14336")
    p(f"s_add_u32 s30, s30, {OFF_XNF}")
    p("s_waitcnt lgkmcnt(0)")
    for ks in range(14):
        if ks and ks % 4 == 0: p("s_add_u32 s30, s30, 4096")
        p(f"buffer_store_dwordx4 {R(F0 + 4 * ks, 4)}, {R(vL16)}, {SRD}, s30 offen offset:{(ks % 4) * 1024} sc1")
    p(f"s_mul_i32 s30, s23, 28672")
    p(f"s_mul_i32 s31, s21, 3072")
    p(f"s_add_u32 s31, s31, s30")
    p(f"s_add_u32 s31, s31, {OFF_XK}")
    p(f"s_lshl_b32 s29, s21, 3")
    p(f"s_add_u32 s30, s30, s29")
    p(f"s_add_u32 s30, s30, {OFF_XK + 6144}")
    for w2 in range(4):
        for pp in range(3):
            p(f"buffer_store_dwordx4 {R(K0 + 14 * w2 + 4 * pp, 4)}, {R(vL16)}, {SRD}, s31 offen offset:{1024 * pp} sc1")
        p(f"buffer_store_dwordx2 {R(K0 + 14 * w2 + 12, 2)}, {R(vL16)}, {SRD}, s30 offen sc1")
        if w2 < 3:
            p("s_add_u32 s31, s31, 7168"); p("s_add_u32 s30, s30, 7168")
    get_epoch(p, FAIL, 6)
    p(f"s_lshl_b32 s30, {S(sU)}, 2")
    p(f"s_add_u32 s30, s30, {S(sW)}")
    p(f"s_lshl_b32 s30, s30, 3")
    p(f"s_add_u32 s30, s30, {FL_LN}")
    p("s_waitcnt vmcnt(0)")
    set_flag(p, "s30", 6)
    p(f"s_branch {DONE}")

def phase0(p, FAIL, DONE):
    LN = p.newlabel("ln")
    p(f"s_cmp_ge_u32 {S(sRANK)}, 28")
    p(f"s_cbranch_scc1 {LN}")
    fab(p, FAIL, DONE)
    p.label(LN)
    layernorm(p, FAIL, DONE)
```

```python
from common import *
import chain, workers
from chain import XR, YR

def poison_loop(p, vaddr, vval, start, stride, count, mods=""):
    L = p.newlabel("poi")
    p(f"s_mov_b32 s30, {start}")
    p.label(L)
    p(f"buffer_store_dword {R(vval)}, {R(vaddr)}, {SRD}, s30 offen {mods}")
    p(f"s_add_u32 s30, s30, {stride}")
    p(f"s_cmp_lt_u32 s30, {start + stride * count}")
    p(f"s_cbranch_scc1 {L}")

def init_flag(p, slot, vt):
    p("s_waitcnt vmcnt(0)")
    p(f"s_add_u32 s30, {S(sROLE)}, {slot}")
    p("s_lshl_b32 s30, s30, 2"); p(f"s_add_u32 s30, s30, {S(sW)}"); p("s_lshl_b32 s30, s30, 3")
    p(f"s_add_u32 s30, s30, {FL_IN}")
    set_flag(p, "s30", vt)

def role_X(p, FAIL, END, st):
    X = XR
    lane, vL8, vt = 40, 41, 42
    lane_id(p, lane)
    chain.x_setup(p, lane)
    p(f"v_lshlrev_b32 {R(vL8)}, 3, {R(lane)}")
    p("v_mov_b32 v44, -1")
    poison_loop(p, X.vPO, 44, OFF_PX, PX_STRIDE, 63)
    init_flag(p, 0, 44)
    p(f"s_lshl_b32 s29, {S(sROLE)}, 8")
    p(f"s_add_u32 s29, s29, {FL_FF}")
    wait_flags(p, vL8, "s29", 28, vt, FAIL, sleep=1)
    st(p, 2)
    chain.x_load_weights(p)
    workers.wait_all_ln(p, vL8, vt, FAIL)
    p(f"s_mov_b32 s29, {FL_IN + 16 * 32}")
    wait_flags(p, vL8, "s29", 56, vt, FAIL, sleep=1)
    p("s_waitcnt lgkmcnt(0)")
    p("s_barrier")
    st(p, 3)
    ool = chain.role_X(p, FAIL)
    st(p, 4)
    p(f"s_branch {END}")
    ool(p)

def role_Y(p, FAIL, END, st):
    Y = YR
    lane, vL8, vt = 175, 186, 188
    vFV, vFO, vF = Y.vFL, 179, 190
    sFV, sFU, sFU1, sFU2 = 44, 45, 46, 47
    SM = 32
    make_srd(p, SM, K_MEM0, 8 * 896)
    lane_id(p, lane)
    chain.y_setup(p, lane)
    p(f"v_lshlrev_b32 {R(vL8)}, 3, {R(lane)}")
    workers.flag_setup(p, vF, vFO, lane)
    p(f"s_and_b32 s31, {S(sW)}, 1"); p("s_lshl_b32 s31, s31, 6")
    p(f"v_add_u32 v0, s31, {R(lane)}")
    p("v_bfe_u32 v1, v0, 2, 3"); p("v_mul_u32_u24 v1, 896, v1")
    p("v_lshrrev_b32 v2, 5, v0"); p("v_lshl_add_u32 v1, v2, 4, v1")
    p("v_and_b32 v2, 3, v0"); p("v_lshl_add_u32 v1, v2, 2, v1")
    p(f"s_lshl_b32 s30, {S(sROLE)}, 6")
    p(f"buffer_load_dword {R(Y.MP)}, v1, {S(SM, 4)}, s30 offen")
    p("v_mov_b32 v4, -1")
    poison_loop(p, Y.vMO, 4, OFF_MEM + MEM_STRIDE, MEM_STRIDE, 63)
    poison_loop(p, Y.vMO, 4, OFF_MEMW, MEM_STRIDE, 64, "sc1")
    p("s_waitcnt vmcnt(0)")
    p(f"v_min_u32 {R(Y.MP)}, -2, {R(Y.MP)}")
    p(f"buffer_store_dword {R(Y.MP)}, {R(Y.vMO)}, {SRD}, {S(Y.sMEM)} offen")
    init_flag(p, 16, 4)
    p(f"v_lshrrev_b32 v0, 2, {R(lane)}"); p("v_lshlrev_b32 v0, 8, v0")
    p(f"v_and_b32 v1, 3, {R(lane)}"); p("v_lshl_add_u32 v0, v1, 3, v0")
    p(f"s_lshl_b32 s29, {S(sW)}, 10")
    p(f"s_lshr_b32 s30, {S(sROLE)}, 1"); p("s_lshl_b32 s30, s30, 5")
    p("s_add_u32 s29, s29, s30")
    p(f"s_add_u32 s29, s29, {FL_FF + 16 * 256}")
    wait_flags(p, 0, "s29", 16, vt, FAIL, sleep=1)
    st(p, 2)
    chain.y_load_weights(p)
    p("s_waitcnt lgkmcnt(0)")
    for r in range(8): p(f"v_mov_b32 {R(Y.UF + r)}, 0")
    for k, nl in ((0, 64), (1, 56)):
        p(f"s_mov_b32 s29, {FL_IN + 512 * k}")
        wait_flags(p, vL8, "s29", nl, vt, FAIL, sleep=1)
    p(f"v_and_b32 {R(vFV)}, 15, {R(lane)}"); p(f"v_lshlrev_b32 {R(vFV)}, 3, {R(vFV)}")
    p(f"s_lshl_b32 s30, {S(sW)}, 7")
    p(f"s_add_u32 {S(sFV)}, s30, {FL_VX}")
    wait_flags(p, vFV, S(sFV), 64, vt, FAIL, sleep=1)
    p(f"s_lshl_b32 s30, {S(sROLE)}, 2"); p(f"s_add_u32 s30, s30, {S(sW)}"); p("s_lshl_b32 s30, s30, 3")
    p(f"s_add_u32 {S(sFU)}, s30, {FL_UF}")
    p(f"s_mov_b32 {S(sFU1)}, 0xf0000000"); p(f"s_mov_b32 {S(sFU2)}, 0xf0000000")
    p("s_waitcnt lgkmcnt(0)")
    p("s_barrier")
    st(p, 3)
    early = [f"buffer_store_dwordx2 {R(vF, 2)}, {R(vFO)}, {SRD}, {S(sFU2)} offen sc1",
             f"buffer_load_dwordx2 {R(Y.FL, 2)}, {R(vFV)}, {SRD}, {S(sFV)} offen offset:512 sc1"]
    def late(p):
        ok = p.newlabel("yvxok")
        p(f"s_add_u32 {S(sFV)}, {S(sFV)}, 512")
        p(f"s_mov_b32 {S(sFU2)}, {S(sFU1)}"); p(f"s_mov_b32 {S(sFU1)}, {S(sFU)}")
        p(f"s_add_u32 {S(sFU)}, {S(sFU)}, {56 * 8}")
        p(f"v_xor_b32 {R(Y.FL)}, {S(sN)}, {R(Y.FL)}")
        p(f"v_xor_b32 {R(Y.FL + 1)}, {S(sNN)}, {R(Y.FL + 1)}")
        p(f"v_or_b32 {R(Y.FL)}, {R(Y.FL)}, {R(Y.FL + 1)}")
        p(f"v_cmp_ne_u32 vcc, 0, {R(Y.FL)}")
        p(f"s_cbranch_vccz {ok}")
        p(f"s_cmp_ge_u32 {S(Y.sSTEP)}, 63")
        p(f"s_cbranch_scc1 {ok}")
        wait_flags(p, vFV, S(sFV), 64, Y.FL, FAIL, sleep=1)
        p.label(ok)
    def tail(p):
        p("s_waitcnt vmcnt(0)")
        p(f"buffer_store_dwordx2 {R(vF, 2)}, {R(vFO)}, {SRD}, {S(sFU1)} offen sc1")
        p(f"buffer_store_dwordx2 {R(vF, 2)}, {R(vFO)}, {SRD}, {S(sFU)} offen sc1")
    chain.role_Y(p, FAIL, hooks=dict(early=early, late=late, tail=tail))
    st(p, 4)
    p(f"s_branch {END}")

RANGES = (("VW", 0, 32), ("TW", 32, 64), ("GU", 64, 106), ("GD", 106, 118), ("F", 118, 174))
def dispatch(p, roles, END, FAIL, opt):
    chain.OPT.clear(); chain.OPT.update(dict(xp=2, yp=2, pgap=12, ystep=2)); chain.OPT.update(opt)
    on = opt.get("rt")
    def st(p, k):
        if not on: return
        p("s_memrealtime s[40:41]")
        p(f"s_lshl_b32 s42, {S(sXCC)}, 5"); p(f"s_add_u32 s42, s42, {S(sRANK)}"); p("s_lshl_b32 s42, s42, 2")
        p(f"s_add_u32 s42, s42, {S(sW)}"); p("s_lshl_b32 s42, s42, 6"); p(f"s_add_u32 s42, s42, {OFF_DBG + 4 * k}")
        p("s_waitcnt vmcnt(0) lgkmcnt(0)")
        p("s_mov_b64 s[14:15], exec"); p("s_mov_b64 exec, 1")
        p("v_mov_b32 v114, s40"); p("v_mov_b32 v115, 0")
        p(f"buffer_store_dword v114, v115, {SRD}, s42 offen")
        p("s_waitcnt vmcnt(0)")
        p("s_mov_b64 exec, s[14:15]")
    FIN = p.newlabel("fin")
    p("s_waitcnt vmcnt(0) lgkmcnt(0)")
    p("s_barrier")
    st(p, 1)
    WK = p.newlabel("wk"); LX, LY = p.newlabel("rx"), p.newlabel("ry")
    p(f"s_cmp_eq_u32 {S(sXCC)}, 0")
    p(f"s_cbranch_scc0 {WK}")
    p(f"s_cmp_lt_u32 {S(sRANK)}, 16")
    p(f"s_cbranch_scc1 {LX}")
    p(f"s_cmp_lt_u32 {S(sRANK)}, 30")
    p(f"s_cbranch_scc1 {LY}")
    p(f"s_branch {END}")
    p.label(WK)
    p(f"s_mul_i32 {S(sROLE)}, {S(sRANK)}, 7")
    p(f"s_add_u32 {S(sROLE)}, {S(sROLE)}, {S(sXCC)}")
    p(f"s_sub_u32 {S(sROLE)}, {S(sROLE)}, 1")
    labs = {}
    for name, lo, hi in RANGES:
        labs[name] = p.newlabel(name)
        p(f"s_cmp_lt_u32 {S(sROLE)}, {hi}")
        p(f"s_cbranch_scc1 {labs[name]}")
    p(f"s_branch {END}")
    for name, lo, hi in RANGES:
        p.label(labs[name])
        if name not in roles:
            p(f"s_branch {END}"); continue
        if lo: p(f"s_sub_u32 {S(sROLE)}, {S(sROLE)}, {lo}")
        getattr(workers, "role_" + name)(p, FAIL, FIN)
    p.label(LX)
    if "X" in roles:
        p(f"s_mov_b32 {S(sROLE)}, {S(sRANK)}")
        role_X(p, FAIL, FIN, st)
    else: p(f"s_branch {END}")
    p.label(LY)
    if "Y" in roles:
        p(f"s_sub_u32 {S(sROLE)}, {S(sRANK)}, 16")
        role_Y(p, FAIL, FIN, st)
    else: p(f"s_branch {END}")
    p.label(FIN)
    if on:
        p("s_waitcnt vmcnt(0) lgkmcnt(0)")
        st(p, 5)
```

```python
from common import *
import chain

def Wmap(t, jc):
    f = 7 * t + jc
    return 256 + 8 * f if f < 32 else 120 + 8 * (f - 32)
def Wks(t, ks): return Wmap(t, ks >> 1) + 4 * (ks & 1)

def wait_all_ln(p, vL8, vt, FAIL):
    wait_flags(p, vL8, f"s29", 64, vt, FAIL) if False else None
    for k in range(2):
        p(f"s_mov_b32 s29, {FL_LN + 512 * k}")
        wait_flags(p, vL8, "s29", 64, vt, FAIL)

def load_matrix(p, smat, vL16, vL8, vt, FAIL):
    p(f"s_lshl_b32 s29, {S(smat)}, 8")
    p(f"s_add_u32 s29, s29, {FL_FF}")
    wait_flags(p, vL8, "s29", 28, vt, FAIL)
    p(f"s_mul_i32 s31, {S(smat)}, {28 * 14336}")
    p(f"s_mul_i32 s30, {S(sW)}, {7 * 14336}")
    p(f"s_add_u32 s31, s31, s30")
    p(f"s_add_u32 s29, s31, {OFF_F}")
    chain.load_weights(p, [Wmap(t, jc) for t in range(7) for jc in range(7)], 29, vL16)

def xnf_dma(vL16, sSRC, sDST):
    out = []
    for f in range(7):
        g = []
        if f == 0: g += [f"s_mov_b32 m0, {S(sDST)}"]
        if f == 4: g += [f"s_add_u32 m0, {S(sDST)}, 4096", f"s_add_u32 s30, {S(sSRC)}, 4096"]
        g.append(f"buffer_load_dwordx4 {R(vL16)}, {SRD}, {S(sSRC) if f < 4 else 's30'} offen offset:{(f % 4) * 1024} sc1 lds")
        out.append(g)
    return out

def seg_stream(p, nt, mfma, vRd, RING, fills):
    def rd(ks):
        for tau in range(2):
            p(f"ds_read_b128 {R(RING + 8 * (ks % 3) + 4 * tau, 4)}, {R(vRd)} offset:{(tau * 14 + ks) * 1024}")
    rd(0); rd(1)
    for ks in range(14):
        if ks + 2 < 14: rd(ks + 2)
        p(f"s_waitcnt lgkmcnt({min(4, 2 * (13 - ks))})")
        ms = mfma(ks, RING + 8 * (ks % 3))
        p(ms[0])
        for i in fills.get(ks, []): p(i)
        for m in ms[1:]: p(m)

def stream_setup(p, sSRC, sDST, sS, vL16, vRd, first_seg_sgpr):
    p(f"s_mul_i32 s30, {S(sS)}, 28672")
    p(f"s_mul_i32 {S(sDST)}, {S(sW)}, 7168")
    p(f"s_add_u32 s30, s30, {S(sDST)}")
    p(f"s_add_u32 {S(sSRC)}, s30, {OFF_XNF}")
    p(f"v_mov_b32 {R(vRd)}, {R(vL16)}")

def next_seg(p, sS, sSRC, sDST, step):
    p(f"s_add_u32 s30, {S(sS)}, {step}")
    p(f"s_add_u32 s31, {S(sSRC)}, {28672 * step}")
    p(f"s_cmp_lt_u32 s30, 64")
    p(f"s_cselect_b32 {S(sSRC)}, s31, 0xf0000000")
    p(f"s_add_u32 s31, {S(sDST)}, 28672")
    p(f"s_sub_u32 s30, {S(sDST)}, 28672")
    p(f"s_cmp_ge_u32 {S(sDST)}, 28672")
    p(f"s_cselect_b32 {S(sDST)}, s30, s31")

def flag_ins(vF, vFO, soff):
    return [f"buffer_store_dwordx2 {R(vF, 2)}, {R(vFO)}, {SRD}, {soff} offen sc1"]
def flag_setup(p, vF, vFO, lane):
    p(f"v_mov_b32 {R(vF)}, {S(sN)}")
    p(f"v_mov_b32 {R(vF + 1)}, {S(sNN)}")
    p(f"v_cmp_eq_u32 vcc, 0, {R(lane)}")
    p(f"v_mov_b32 {R(vFO)}, 0x80000000")
    p(f"v_cndmask_b32 {R(vFO)}, {R(vFO)}, 0, vcc")

def role_VW(p, FAIL, END, NP=2):
    sH, sS, sSRC, sDST, sOUT, sFL, sFLP = 16, 17, 18, 19, 20, 21, 22
    ACC, RING, vL16, vRd, vL8, lane, vF, vFO, vt = 0, 56, 80, 81, 82, 83, 84, 86, 88
    p(f"s_lshr_b32 {S(sH)}, {S(sROLE)}, 1")
    p(f"s_and_b32 {S(sS)}, {S(sROLE)}, 1")
    lane_id(p, lane)
    p(f"v_lshlrev_b32 {R(vL16)}, 4, {R(lane)}")
    p(f"v_lshlrev_b32 {R(vL8)}, 3, {R(lane)}")
    flag_setup(p, vF, vFO, lane)
    p(f"s_add_u32 s23, {S(sH)}, 16")
    load_matrix(p, 23, vL16, vL8, vt, FAIL)
    wait_all_ln(p, vL8, vt, FAIL)
    stream_setup(p, sSRC, sDST, sS, vL16, vRd, sS)
    for g in xnf_dma(vL16, sSRC, sDST):
        for i in g: p(i)
    p(f"s_lshl_b32 s30, {S(sS)}, 4")
    p(f"s_add_u32 s30, s30, {S(sH)}")
    p(f"s_lshl_b32 s31, s30, 2")
    p(f"s_add_u32 s31, s31, {S(sW)}")
    p(f"s_lshl_b32 s31, s31, 3")
    p(f"s_add_u32 {S(sFL)}, s31, {FL_VX}")
    p(f"s_mul_i32 s30, s30, 28672")
    p(f"s_mul_i32 s31, {S(sW)}, 7168")
    p(f"s_add_u32 s30, s30, s31")
    p(f"s_add_u32 {S(sOUT)}, s30, {OFF_VX}")
    p(f"s_mov_b32 {S(sFLP)}, 0xf0000000")
    p("s_waitcnt vmcnt(0)")
    LOOP = p.newlabel("vw"); p.label(LOOP)
    p("s_waitcnt vmcnt(8)")
    p("s_barrier")
    next_seg(p, sS, sSRC, sDST, NP)
    fills = {k: g for k, g in enumerate(xnf_dma(vL16, sSRC, sDST))}
    fills[10] = ["s_waitcnt vmcnt(7)"] + flag_ins(vF, vFO, S(sFLP))
    def mf(ks, r):
        return [f"v_mfma_f32_16x16x32_bf16 {R(ACC + 8 * t + 4 * tau, 4)}, {R(r + 4 * tau, 4)}, {R(Wks(t, ks), 4)}, "
                f"{'0' if ks == 0 else R(ACC + 8 * t + 4 * tau, 4)}" for t in range(7) for tau in range(2)]
    seg_stream(p, 7, mf, vRd, RING, fills)
    p(f"v_xor_b32 {R(vRd)}, {R(vRd)}, {R(vRd)}") if False else None
    p(f"s_cmp_ge_u32 {S(sDST)}, 28672")
    p(f"s_cselect_b32 s31, 28672, 0")
    p(f"v_add_u32 {R(vRd)}, s31, {R(vL16)}")
    p(f"s_add_u32 s30, {S(sOUT)}, 4096")
    for t in range(7):
        a = ACC + 8 * t
        for u in range(4): p(f"v_cvt_pk_bf16_f32 {R(a + u)}, {R(a + 2 * u)}, {R(a + 2 * u + 1)}")
        p(f"buffer_store_dwordx4 {R(a, 4)}, {R(vL16)}, {SRD}, {S(sOUT) if t < 4 else 's30'} offen offset:{(t % 4) * 1024} sc1")
    p(f"s_mov_b32 {S(sFLP)}, {S(sFL)}")
    p(f"s_add_u32 {S(sFL)}, {S(sFL)}, {NP * 512}")
    p(f"s_add_u32 {S(sOUT)}, {S(sOUT)}, {NP * 16 * 28672}")
    p(f"s_add_u32 {S(sS)}, {S(sS)}, {NP}")
    p(f"s_cmp_lt_u32 {S(sS)}, 64")
    p(f"s_cbranch_scc1 {LOOP}")
    p("s_waitcnt vmcnt(0)")
    for i in flag_ins(vF, vFO, S(sFLP)): p(i)
    p(f"s_branch {END}")

def role_TW(p, FAIL, END, NP=2):
    sH, sS, sSRC, sDST, sPT, sFL, sKS, sKD, sMW = 16, 17, 18, 19, 20, 21, 22, 23, 24
    sMASK = 44
    ACC, RING, KY, MK = 0, 56, 56, 72
    vL16, vKL, vMK, vMKL, vSW, vSR, vSRm, vPO, vRd, vL8, lane, vF, vFO, vt = 86, 87, 88, 89, 90, 91, 92, 93, 94, 95, 96, 98, 100, 102
    LK, LR = 57344, 86016
    p(f"s_lshr_b32 {S(sH)}, {S(sROLE)}, 1")
    p(f"s_and_b32 {S(sS)}, {S(sROLE)}, 1")
    lane_id(p, lane)
    p(f"v_lshlrev_b32 {R(vL16)}, 4, {R(lane)}")
    p(f"v_lshlrev_b32 {R(vL8)}, 3, {R(lane)}")
    flag_setup(p, vF, vFO, lane)
    n, g, a, b, c = 104, 105, 106, 107, 108
    chain.lane_fields(p, lane, n, g)
    p(f"s_mul_i32 s30, {S(sW)}, 7168")
    p(f"s_add_u32 {S(sKD)}, s30, {LK}")
    p(f"v_add_u32 {R(vKL)}, {S(sKD)}, {R(vL16)}")
    p(f"s_mul_i32 s31, {S(sS)}, 28672")
    p(f"s_add_u32 s30, s30, s31")
    p(f"s_add_u32 {S(sKS)}, s30, {OFF_XK}")
    p(f"v_and_b32 {R(a)}, 7, {R(n)}")
    p(f"v_lshlrev_b32 {R(a)}, 4, {R(a)}")
    p(f"s_mul_i32 s30, {S(sW)}, {14 * 128}")
    p(f"v_add_u32 {R(a)}, s30, {R(a)}")
    p(f"v_lshl_add_u32 {R(vMK)}, {R(g)}, 7, {R(a)}")
    p(f"v_lshrrev_b32 {R(b)}, 1, {R(g)}")
    p(f"v_lshl_add_u32 {R(a)}, {R(b)}, 7, {R(a)}")
    p(f"v_and_b32 {R(c)}, 1, {R(g)}")
    p(f"v_lshl_add_u32 {R(a)}, {R(c)}, 3, {R(a)}")
    p(f"v_add_u32 {R(vMKL)}, {12 * 128}, {R(a)}")
    p(f"s_mul_i32 s30, {S(sW)}, 6144")
    p(f"s_add_u32 s30, s30, {LR}")
    p(f"v_add_u32 {R(vSW)}, s30, {R(vL16)}")
    p(f"s_and_b32 s31, {S(sW)}, 1")
    p(f"s_mul_i32 s30, s31, 3072")
    p(f"s_add_u32 s30, s30, {LR}")
    p(f"v_lshl_add_u32 {R(a)}, {R(c)}, 4, {R(n)}")
    p(f"v_lshlrev_b32 {R(a)}, 4, {R(a)}")
    p(f"v_add_u32 {R(a)}, s30, {R(a)}")
    p(f"v_lshl_add_u32 {R(vSR)}, {R(b)}, 10, {R(a)}")
    p(f"v_lshl_add_u32 {R(vSRm)}, {R(b)}, 3, {R(a)}")
    p(f"v_add_u32 {R(vSRm)}, 2048, {R(vSRm)}")
    p(f"v_lshl_add_u32 {R(a)}, {R(c)}, 4, {R(n)}")
    p(f"v_lshlrev_b32 {R(a)}, 4, {R(a)}")
    p(f"v_lshl_add_u32 {R(a)}, {R(b)}, 3, {R(a)}")
    p(f"s_lshr_b32 s30, {S(sH)}, 2")
    p(f"s_lshl_b32 s30, s30, 11")
    p(f"s_and_b32 s29, {S(sH)}, 1")
    p(f"s_lshl_b32 s29, s29, 9")
    p(f"s_add_u32 s30, s30, s29")
    p(f"s_lshr_b32 s29, {S(sH)}, 1")
    p(f"s_and_b32 s29, s29, 1")
    p(f"s_lshl_b32 s29, s29, 2")
    p(f"s_add_u32 s30, s30, s29")
    p(f"s_add_u32 s30, s30, 32768")
    p(f"s_lshl_b32 s29, {S(sH)}, 11")
    p(f"s_sub_u32 s30, s30, s29")
    p(f"v_add_u32 {R(vPO)}, s30, {R(a)}")
    p(f"s_mul_i32 s30, {S(sS)}, {PT_STRIDE}")
    p(f"s_add_u32 s30, s30, s29")
    p(f"s_lshl_b32 s29, s31, 10")
    p(f"s_add_u32 s30, s30, s29")
    p(f"s_add_u32 {S(sPT)}, s30, {OFF_PT}")
    p(f"v_lshlrev_b32 {R(b)}, 4, {R(b)}")
    p(f"v_lshl_add_u32 {R(b)}, {R(c)}, 2, {R(b)}")
    p(f"v_lshrrev_b32 {R(a)}, 3, {R(n)}")
    p(f"v_lshlrev_b32 {R(a)}, 4, {R(a)}")
    p(f"v_bfe_u32 {R(c)}, {R(n)}, 1, 1")
    p(f"v_lshl_add_u32 {R(a)}, {R(c)}, 3, {R(a)}")
    p(f"v_bfe_u32 {R(c)}, {R(n)}, 2, 1")
    p(f"v_lshl_add_u32 {R(a)}, {R(c)}, 2, {R(a)}")
    p(f"v_and_b32 {R(c)}, 1, {R(n)}")
    p(f"v_add_u32 {R(a)}, {R(a)}, {R(c)}")
    p(f"s_lshl_b32 s30, s31, 1")
    p(f"v_add_u32 {R(a)}, s30, {R(a)}")
    p(f"v_sub_u32 {R(a)}, {R(a)}, {R(b)}")
    for k in range(8):
        p(f"v_cmp_le_i32 {S(sMASK + 2 * k, 2)}, {(k & 3) + 8 * (k >> 2)}, {R(a)}")
    p(f"s_lshl_b32 s30, {S(sS)}, 4")
    p(f"s_add_u32 s30, s30, {S(sH)}")
    p(f"s_lshl_b32 s30, s30, 1")
    p(f"s_add_u32 s30, s30, s31")
    p(f"s_lshl_b32 s30, s30, 3")
    p(f"s_add_u32 {S(sFL)}, s30, {FL_PT}")
    p(f"s_mul_i32 s30, {S(sS)}, {MEM_STRIDE}")
    p(f"s_add_u32 {S(sMW)}, s30, {OFF_MEMW}")
    load_matrix(p, sH, vL16, vL8, vt, FAIL)
    wait_all_ln(p, vL8, vt, FAIL)
    p(f"s_mov_b32 s29, {FL_IN + 16 * 32}")
    wait_flags(p, vL8, "s29", 56, vt, FAIL)
    stream_setup(p, sSRC, sDST, sS, vL16, vRd, sS)
    for gr in xnf_dma(vL16, sSRC, sDST):
        for i in gr: p(i)
    LOOP = p.newlabel("tw"); p.label(LOOP)
    p("s_waitcnt vmcnt(0)")
    p("s_barrier")
    next_seg(p, sS, sSRC, sDST, NP)
    fills = {k: gr for k, gr in enumerate(xnf_dma(vL16, sKS, sKD) + xnf_dma(vL16, sSRC, sDST))}
    def T(t, tau): return ACC + 28 * tau + 4 * t
    def mf(ks, r):
        return [f"v_mfma_f32_16x16x32_bf16 {R(T(t, tau), 4)}, {R(Wks(t, ks), 4)}, {R(r + 4 * tau, 4)}, "
                f"{'0' if ks == 0 else R(T(t, tau), 4)}" for t in range(7) for tau in range(2)]
    seg_stream(p, 7, mf, vRd, RING, fills)
    p(f"s_cmp_ge_u32 {S(sDST)}, 28672")
    p(f"s_cselect_b32 s31, 28672, 0")
    p(f"v_add_u32 {R(vRd)}, s31, {R(vL16)}")
    def cvt(d, s): p(f"v_cvt_pk_bf16_f32 {R(d)}, {R(s)}, {R(s + 1)}")
    for pp in range(4):
        for tau in range(2):
            x = T(2 * pp, tau)
            cvt(x, x); cvt(x + 1, x + 2)
            if pp < 3: cvt(x + 2, x + 4); cvt(x + 3, x + 6)
    chain.poll(p, [(MK, 4, vMK, 0), (MK + 4, 4, vMK, 512), (MK + 8, 4, vMK, 1024), (MK + 12, 2, vMKL, 0)], sMW, vt, 28, FAIL, back=2)
    def krd(pp):
        r = KY + 8 * (pp & 1)
        if pp < 3:
            for k in range(2): p(f"ds_read_b128 {R(r + 4 * k, 4)}, {R(vKL)} offset:{(3 * k + pp) * 1024}")
        else:
            p(f"ds_read_b128 {R(r, 4)}, {R(vKL)} offset:6144")
    def SA(kap, tau): return T(2 * kap + 1, tau)
    krd(0); krd(1)
    for pp in range(4):
        p(f"s_waitcnt lgkmcnt({(2, 2, 1, 0)[pp]})")
        r = KY + 8 * (pp & 1)
        for kap in range(3):
            for tau in range(2):
                c_ = "0" if pp == 0 else R(SA(kap, tau), 4)
                if pp < 3:
                    key = r + 4 * kap if kap < 2 else MK + 4 * pp
                    p(f"v_mfma_f32_16x16x32_bf16 {R(SA(kap, tau), 4)}, {R(key, 4)}, {R(T(2 * pp, tau), 4)}, {c_}")
                else:
                    key = r + 2 * kap if kap < 2 else MK + 12
                    p(f"v_mfma_f32_16x16x16_bf16 {R(SA(kap, tau), 4)}, {R(key, 2)}, {R(T(6, tau), 2)}, {c_}")
        if pp + 2 < 4: krd(pp + 2)
    for tau in range(2):
        for kap in range(3):
            p(f"ds_write_b128 {R(vSW)}, {R(SA(kap, tau), 4)} offset:{(3 * tau + kap) * 1024}")
    p("s_waitcnt lgkmcnt(0)")
    p("s_barrier")
    skip = p.newlabel("twskip")
    p(f"s_cmp_lt_u32 {S(sW)}, 2")
    p(f"s_cbranch_scc0 {skip}")
    V = 0
    for w2 in range(4):
        p(f"ds_read_b128 {R(V + 12 * w2, 4)}, {R(vSR)} offset:{w2 * 6144}")
        p(f"ds_read_b128 {R(V + 12 * w2 + 4, 4)}, {R(vSR)} offset:{w2 * 6144 + 512}")
        p(f"ds_read_b64 {R(V + 12 * w2 + 8, 2)}, {R(vSRm)} offset:{w2 * 6144}")
    p("s_waitcnt lgkmcnt(0)")
    for (x, y) in ((0, 12), (24, 36), (0, 24)):
        for k in range(0, 10, 2): p(f"v_pk_add_f32 {R(V + x + k, 2)}, {R(V + x + k, 2)}, {R(V + y + k, 2)}")
    m, t = 12, 13
    p(f"v_mov_b32 {R(t)}, 0xff800000")
    for k in range(8): p(f"v_cndmask_b32 {R(V + k)}, {R(t)}, {R(V + k)}, {S(sMASK + 2 * k, 2)}")
    p(f"v_max3_f32 {R(m)}, {R(V)}, {R(V + 1)}, {R(V + 2)}")
    for k in (3, 5, 7): p(f"v_max3_f32 {R(m)}, {R(m)}, {R(V + k)}, {R(V + k + 1)}")
    p(f"v_max_f32 {R(m)}, {R(m)}, {R(V + 9)}")
    def across(op):
        for sw in ("v_permlane16_swap_b32", "v_permlane32_swap_b32"):
            p(f"v_mov_b32 {R(t)}, {R(m)}")
            p(f"{sw} {R(m)}, {R(t)}")
            p(f"{op} {R(m)}, {R(m)}, {R(t)}")
    across("v_max_f32")
    for k in range(10): p(f"v_sub_f32 {R(V + k)}, {R(V + k)}, {R(m)}")
    for k in range(10): p(f"v_exp_f32 {R(V + k)}, {R(V + k)}")
    p(f"v_add_f32 {R(m)}, {R(V)}, {R(V + 1)}")
    for k in range(2, 10): p(f"v_add_f32 {R(m)}, {R(m)}, {R(V + k)}")
    across("v_add_f32")
    p(f"v_rcp_f32 {R(m)}, {R(m)}")
    for k in range(10): p(f"v_mul_f32 {R(V + k)}, {R(V + k)}, {R(m)}")
    O = 16
    cvt(O, V); cvt(O + 1, V + 4); cvt(O + 2, V + 2); cvt(O + 3, V + 6); cvt(O + 4, V + 8)
    p(f"buffer_store_dwordx4 {R(O, 4)}, {R(vL16)}, {SRD}, {S(sPT)} offen sc1")
    p(f"buffer_store_dword {R(O + 4)}, {R(vPO)}, {SRD}, {S(sPT)} offen sc1")
    p("s_waitcnt vmcnt(0)")
    for i in flag_ins(vF, vFO, S(sFL)): p(i)
    p.label(skip)
    p(f"s_add_u32 {S(sKS)}, {S(sKS)}, {NP * 28672}")
    p(f"s_add_u32 {S(sPT)}, {S(sPT)}, {NP * PT_STRIDE}")
    p(f"s_add_u32 {S(sFL)}, {S(sFL)}, {NP * 256}")
    p(f"s_add_u32 {S(sMW)}, {S(sMW)}, {NP * MEM_STRIDE}")
    p(f"s_add_u32 {S(sS)}, {S(sS)}, {NP}")
    p(f"s_cmp_lt_u32 {S(sS)}, 64")
    p(f"s_cbranch_scc1 {LOOP}")
    p(f"s_branch {END}")

def divmod_const(p, src, d, q, r):
    m = (65536 + d - 1) // d
    assert all((x * m) >> 16 == x // d for x in range(256))
    p(f"s_mul_i32 {S(q)}, {S(src)}, {m}")
    p(f"s_lshr_b32 {S(q)}, {S(q)}, 16")
    p(f"s_mul_i32 s30, {S(q)}, {d}")
    p(f"s_sub_u32 {S(r)}, {S(src)}, s30")

LOG2E = math.log2(math.e)
def sigmoid_ins(p, dst, x, sC):
    p(f"v_mul_f32 {R(dst)}, {S(sC)}, {R(x)}")
    p(f"v_exp_f32 {R(dst)}, {R(dst)}")
    p(f"v_add_f32 {R(dst)}, 1.0, {R(dst)}")
    p(f"v_rcp_f32 {R(dst)}, {R(dst)}")
def unpack(p, lo, hi, src, sMSK):
    p(f"v_lshlrev_b32 {R(lo)}, 16, {R(src)}")
    p(f"v_and_b32 {R(hi)}, {S(sMSK)}, {R(src)}")

def role_GU(p, FAIL, END, NP=3):
    sB, sS, sSRC, sDST, sOUT, sFL, sFLP, sC, sMSK = 16, 17, 18, 19, 20, 21, 22, 23, 24
    SG, SU = 32, 36
    ACC, RING, vL16, vRd, vL8, lane, vF, vFO, vt, vS, vT, E = 0, 32, 56, 57, 58, 59, 60, 62, 64, 68, 72, 76
    LW = 57344
    def W(mat, tf, ks): return 256 + 4 * ((2 * mat + tf) * 14 + ks)
    divmod_const(p, sROLE, 14, sS, sB)
    make_srd(p, SG, K_G, 448 * 3584); make_srd(p, SU, K_U, 448 * 3584)
    lane_id(p, lane)
    p(f"v_lshlrev_b32 {R(vL16)}, 4, {R(lane)}")
    p(f"v_lshlrev_b32 {R(vL8)}, 3, {R(lane)}")
    flag_setup(p, vF, vFO, lane)
    a, b, c, n, g = 76, 77, 78, 79, 80
    p(f"v_lshrrev_b32 {R(a)}, 4, {R(lane)}")
    p(f"v_mul_u32_u24 {R(b)}, 3584, {R(a)}")
    p(f"v_and_b32 {R(a)}, 1, {R(a)}")
    p(f"v_lshlrev_b32 {R(a)}, 1, {R(a)}")
    p(f"v_and_b32 {R(c)}, 15, {R(lane)}")
    p(f"v_xor_b32 {R(a)}, {R(a)}, {R(c)}")
    for i in range(4):
        p(f"v_xor_b32 {R(c)}, {4 * i}, {R(a)}")
        p(f"v_lshl_add_u32 {R(vS + i)}, {R(c)}, 4, {R(b)}")
    chain.lane_fields(p, lane, n, g)
    p(f"v_lshrrev_b32 {R(a)}, 1, {R(g)}")
    p(f"v_lshlrev_b32 {R(a)}, 4, {R(a)}")
    p(f"v_and_b32 {R(g)}, 1, {R(g)}")
    p(f"v_lshlrev_b32 {R(g)}, 2, {R(g)}")
    p(f"v_and_b32 {R(b)}, 8, {R(n)}")
    p(f"v_or_b32 {R(g)}, {R(g)}, {R(b)}")
    p(f"v_bfe_u32 {R(b)}, {R(n)}, 2, 1")
    p(f"v_add3_u32 {R(a)}, {R(a)}, {R(g)}, {R(b)}")
    p(f"v_lshl_add_u32 {R(g)}, {R(b)}, 1, {R(g)}")
    p(f"v_lshlrev_b32 {R(a)}, 8, {R(a)}")
    p(f"v_and_b32 {R(b)}, 1, {R(n)}")
    p(f"v_lshl_add_u32 {R(a)}, {R(b)}, 3, {R(a)}")
    p(f"v_add_u32 {R(a)}, {LW}, {R(a)}")
    p(f"v_bfe_u32 {R(b)}, {R(n)}, 1, 1")
    p(f"s_lshl_b32 s30, {S(sW)}, 2")
    p(f"v_or_b32 {R(b)}, s30, {R(b)}")
    p(f"v_xor_b32 {R(b)}, {R(b)}, {R(g)}")
    p(f"v_lshl_add_u32 {R(vT)}, {R(b)}, 4, {R(a)}")
    p(f"v_xor_b32 {R(b)}, 2, {R(b)}")
    p(f"v_lshl_add_u32 {R(vT + 1)}, {R(b)}, 4, {R(a)}")
    p(f"v_add_u32 {R(vT + 2)}, 0x8000, {R(vT)}")
    p(f"v_add_u32 {R(vT + 3)}, 0x8000, {R(vT + 1)}")
    p(f"s_mul_i32 s20, {S(sW)}, {16 * 3584}")
    p(f"s_lshl_b32 s31, {S(sB)}, 8")
    p(f"s_add_u32 s20, s20, s31")
    p(f"s_lshl_b32 s21, {S(sW)}, 12")
    p(f"s_add_u32 s21, s21, {LW}")
    def wdma(c_):
        for mat in range(2):
            for i in range(4):
                p(f"s_add_u32 m0, s21, {(c_ & 1) * 32768 + mat * 16384 + i * 1024}")
                p(f"s_add_u32 s30, s20, {(64 * c_ + 4 * i) * 3584}")
                p(f"buffer_load_dwordx4 {R(vS + i)}, {S(SG if mat == 0 else SU, 4)}, s30 offen lds")
    wdma(0)
    for c_ in range(7):
        p("s_waitcnt vmcnt(0) lgkmcnt(0)")
        p("s_barrier")
        if c_ < 6: wdma(c_ + 1)
        for hf in range(2):
            for mat in range(2):
                for tf in range(2):
                    for half in range(2):
                        p(f"ds_read_b64_tr_b16 {R(W(mat, tf, 2 * c_ + hf) + 2 * half, 2)}, {R(vT + 2 * (c_ & 1) + tf)} offset:{mat * 16384 + hf * 8192 + half * 512}")
    wait_all_ln(p, vL8, vt, FAIL)
    stream_setup(p, sSRC, sDST, sS, vL16, vRd, sS)
    for gr in xnf_dma(vL16, sSRC, sDST):
        for i in gr: p(i)
    p(f"s_lshl_b32 s31, {S(sB)}, 2")
    p(f"s_add_u32 s31, s31, {S(sW)}")
    p(f"s_mul_i32 s30, {S(sS)}, 56")
    p(f"s_add_u32 s29, s30, s31")
    p(f"s_lshl_b32 s29, s29, 3")
    p(f"s_add_u32 {S(sFL)}, s29, {FL_H1}")
    p(f"s_lshl_b32 s30, s30, 1")
    p(f"s_add_u32 s30, s30, s31")
    p(f"s_lshl_b32 s30, s30, 10")
    p(f"s_add_u32 {S(sOUT)}, s30, {OFF_H1}")
    p(f"s_mov_b32 {S(sFLP)}, 0xf0000000")
    p(f"s_mov_b32 {S(sC)}, {fbits(-LOG2E)}")
    p(f"s_mov_b32 {S(sMSK)}, 0xffff0000")
    p("s_waitcnt vmcnt(0) lgkmcnt(0)")
    LOOP = p.newlabel("gu"); p.label(LOOP)
    p("s_waitcnt vmcnt(3)")
    p("s_barrier")
    next_seg(p, sS, sSRC, sDST, NP)
    fills = {k: gr for k, gr in enumerate(xnf_dma(vL16, sSRC, sDST))}
    fills[10] = ["s_waitcnt vmcnt(7)"] + flag_ins(vF, vFO, S(sFLP))
    def A(mat, tf, tau): return ACC + 4 * (4 * tau + 2 * mat + tf)
    def mf(ks, r):
        return [f"v_mfma_f32_16x16x32_bf16 {R(A(mat, tf, tau), 4)}, {R(W(mat, tf, ks), 4)}, {R(r + 4 * tau, 4)}, "
                f"{'0' if ks == 0 else R(A(mat, tf, tau), 4)}" for mat in range(2) for tf in range(2) for tau in range(2)]
    seg_stream(p, 4, mf, vRd, RING, fills)
    p(f"s_cmp_ge_u32 {S(sDST)}, 28672")
    p(f"s_cselect_b32 s31, 28672, 0")
    p(f"v_add_u32 {R(vRd)}, s31, {R(vL16)}")
    p(f"s_add_u32 s30, {S(sOUT)}, {56 * 1024}")
    for tau in range(2):
        gq, uq = A(0, 0, tau), A(1, 0, tau)
        for k in range(0, 8, 2):
            p(f"v_cvt_pk_bf16_f32 {R(E)}, {R(gq + k)}, {R(gq + k + 1)}")
            p(f"v_cvt_pk_bf16_f32 {R(E + 1)}, {R(uq + k)}, {R(uq + k + 1)}")
            unpack(p, gq + k, gq + k + 1, E, sMSK)
            unpack(p, uq + k, uq + k + 1, E + 1, sMSK)
        for k in range(8): p(f"v_mul_f32 {R(gq + k)}, {S(sC)}, {R(gq + k)}")
        for k in range(8): p(f"v_exp_f32 {R(gq + k)}, {R(gq + k)}")
        for k in range(8): p(f"v_add_f32 {R(gq + k)}, 1.0, {R(gq + k)}")
        for k in range(8): p(f"v_rcp_f32 {R(gq + k)}, {R(gq + k)}")
        for k in range(0, 8, 2):
            p(f"v_cvt_pk_bf16_f32 {R(E + (k >> 1))}, {R(gq + k)}, {R(gq + k + 1)}")
        for k in range(0, 8, 2):
            unpack(p, gq + k, gq + k + 1, E + (k >> 1), sMSK)
        for k in range(8): p(f"v_mul_f32 {R(gq + k)}, {R(gq + k)}, {R(uq + k)}")
        O = E + 4 + 4 * tau
        for k in range(0, 8, 2):
            p(f"v_cvt_pk_bf16_f32 {R(O + (k >> 1))}, {R(gq + k)}, {R(gq + k + 1)}")
        p(f"buffer_store_dwordx4 {R(O, 4)}, {R(vL16)}, {SRD}, {S(sOUT) if tau == 0 else 's30'} offen sc1")
    p(f"s_mov_b32 {S(sFLP)}, {S(sFL)}")
    p(f"s_add_u32 {S(sFL)}, {S(sFL)}, {NP * 56 * 8}")
    p(f"s_add_u32 {S(sOUT)}, {S(sOUT)}, {NP * 112 * 1024}")
    p(f"s_add_u32 {S(sS)}, {S(sS)}, {NP}")
    p(f"s_cmp_lt_u32 {S(sS)}, 64")
    p(f"s_cbranch_scc1 {LOOP}")
    p("s_waitcnt vmcnt(0)")
    for i in flag_ins(vF, vFO, S(sFLP)): p(i)
    p(f"s_branch {END}")

def role_GD(p, FAIL, END, NP=3):
    sCB, sS, sH, sOUT, sFL, sFH, sC, sMSK, sH2 = 16, 17, 18, 19, 20, 21, 22, 23, 24
    SD = 32
    ACC, RING, vL16, vL8, lane, vF, vFO, vt, vS, vT, vLW, vLR, vGO = 0, 56, 80, 81, 82, 84, 86, 88, 90, 92, 100, 101, 102
    NR = 6
    p(f"s_and_b32 {S(sCB)}, {S(sROLE)}, 3")
    p(f"s_lshr_b32 {S(sS)}, {S(sROLE)}, 2")
    make_srd(p, SD, K_D, 1792 * 896)
    lane_id(p, lane)
    p(f"v_lshlrev_b32 {R(vL16)}, 4, {R(lane)}")
    p(f"v_lshlrev_b32 {R(vL8)}, 3, {R(lane)}")
    flag_setup(p, vF, vFO, lane)
    a, b, c, n, g = 104, 105, 106, 107, 108
    p(f"v_lshrrev_b32 {R(a)}, 4, {R(lane)}")
    p(f"v_mul_u32_u24 {R(b)}, 896, {R(a)}")
    p(f"v_lshlrev_b32 {R(a)}, 1, {R(a)}")
    p(f"v_and_b32 {R(c)}, 15, {R(lane)}")
    p(f"v_xor_b32 {R(a)}, {R(a)}, {R(c)}")
    p(f"v_mov_b32 {R(g)}, 0x80000000")
    for i in range(2):
        p(f"v_xor_b32 {R(c)}, {8 * i}, {R(a)}")
        p(f"v_cmp_gt_u32 vcc, 14, {R(c)}")
        p(f"v_lshl_add_u32 {R(c)}, {R(c)}, 4, {R(b)}")
        p(f"v_cndmask_b32 {R(vS + i)}, {R(g)}, {R(c)}, vcc")
    chain.lane_fields(p, lane, n, g)
    p(f"v_lshrrev_b32 {R(c)}, 2, {R(n)}")
    p(f"v_lshl_add_u32 {R(a)}, {R(g)}, 2, {R(c)}")
    p(f"v_and_b32 {R(g)}, 7, {R(a)}")
    p(f"v_lshlrev_b32 {R(g)}, 1, {R(g)}")
    p(f"v_lshlrev_b32 {R(a)}, 8, {R(a)}")
    p(f"v_and_b32 {R(b)}, 1, {R(n)}")
    p(f"v_lshl_add_u32 {R(a)}, {R(b)}, 3, {R(a)}")
    p(f"s_lshl_b32 s21, {S(sW)}, 14")
    p(f"v_add_u32 {R(a)}, s21, {R(a)}")
    p(f"v_bfe_u32 {R(b)}, {R(n)}, 1, 1")
    p(f"v_xor_b32 {R(b)}, {R(b)}, {R(g)}")
    for ct in range(7):
        p(f"v_xor_b32 {R(c)}, {2 * ct}, {R(b)}")
        p(f"v_lshl_add_u32 {R(vT + ct)}, {R(c)}, 4, {R(a)}")
    p(f"s_mul_i32 s20, {S(sW)}, {448 * 896}")
    p(f"s_mul_i32 s31, {S(sCB)}, 224")
    p(f"s_add_u32 s20, s20, s31")
    def wdma(kk):
        for i in range(8):
            p(f"s_add_u32 m0, s21, {(kk & 1) * 8192 + i * 1024}")
            p(f"s_add_u32 s30, s20, {(32 * kk + 4 * i) * 896}")
            p(f"buffer_load_dwordx4 {R(vS + (i & 1))}, {S(SD, 4)}, s30 offen lds")
    wdma(0)
    for kk in range(14):
        if kk < 13:
            p("s_waitcnt lgkmcnt(0)")
            wdma(kk + 1)
        p(f"s_waitcnt vmcnt({8 if kk < 13 else 0})")
        for ct in range(7):
            for half in range(2):
                p(f"ds_read_b64_tr_b16 {R(Wks(ct, kk) + 2 * half, 2)}, {R(vT + ct)} offset:{(kk & 1) * 8192 + half * 4096}")
    p(f"s_mul_i32 s30, {S(sW)}, 14336")
    p(f"v_add_u32 {R(vLW)}, s30, {R(vL16)}")
    p(f"s_lshl_b32 s30, {S(sW)}, 10")
    p(f"v_add_u32 {R(vLR)}, s30, {R(vL16)}")
    p(f"s_mul_i32 s30, {S(sS)}, 56")
    p(f"s_mul_i32 s31, {S(sW)}, 14")
    p(f"s_add_u32 s29, s30, s31")
    p(f"s_lshl_b32 s29, s29, 3")
    p(f"s_add_u32 {S(sFH)}, s29, {FL_H1}")
    p(f"s_lshl_b32 s30, s30, 1")
    p(f"s_add_u32 s30, s30, s31")
    p(f"s_lshl_b32 s30, s30, 10")
    p(f"s_add_u32 {S(sH)}, s30, {OFF_H1}")
    p(f"s_mul_i32 s30, {S(sS)}, 28")
    p(f"s_mul_i32 s31, {S(sCB)}, 7")
    p(f"s_add_u32 s30, s30, s31")
    p(f"s_lshl_b32 s30, s30, 1")
    p(f"s_add_u32 s30, s30, {S(sW)}")
    p(f"s_lshl_b32 s30, s30, 9")
    p(f"s_add_u32 {S(sOUT)}, s30, {OFF_GF}")
    p(f"s_lshl_b32 s30, {S(sS)}, 2")
    p(f"s_add_u32 s30, s30, {S(sCB)}")
    p(f"s_lshl_b32 s30, s30, 2")
    p(f"s_add_u32 s30, s30, {S(sW)}")
    p(f"s_lshl_b32 s30, s30, 3")
    p(f"s_add_u32 {S(sFL)}, s30, {FL_GF}")
    p(f"s_mov_b32 {S(sC)}, {fbits(-LOG2E)}")
    p(f"s_mov_b32 {S(sMSK)}, 0xffff0000")
    p("s_waitcnt lgkmcnt(0)")
    p("s_barrier")
    LOOP = p.newlabel("gd"); p.label(LOOP)
    wait_flags(p, vL8, S(sFH), 14, vt, FAIL, sleep=4)
    seq = [(kk, tau) for kk in range(14) for tau in range(2)]
    def ld(i):
        kk, tau = seq[i]
        o = (tau * 56 + kk) * 1024
        p(f"s_add_u32 s30, {S(sH)}, {o & ~4095}")
        p(f"buffer_load_dwordx4 {R(RING + 4 * (i % NR), 4)}, {R(vL16)}, {SRD}, s30 offen offset:{o & 4095} sc1")
    for i in range(NR): ld(i)
    for i, (kk, tau) in enumerate(seq):
        p(f"s_waitcnt vmcnt({min(NR - 1, len(seq) - 1 - i)})")
        for ct in range(7):
            a_ = ACC + 8 * ct + 4 * tau
            p(f"v_mfma_f32_16x16x32_bf16 {R(a_, 4)}, {R(Wks(ct, kk), 4)}, {R(RING + 4 * (i % NR), 4)}, {'0' if kk == 0 else R(a_, 4)}")
        if i + NR < len(seq): ld(i + NR)
    p("s_barrier")
    for u in range(14): p(f"ds_write_b128 {R(vLW)}, {R(ACC + 4 * u, 4)} offset:{u * 1024}")
    p("s_waitcnt lgkmcnt(0)")
    p("s_barrier")
    for i in range(4):
        for w2 in range(4):
            p(f"ds_read_b128 {R(16 * i + 4 * w2, 4)}, {R(vLR)} offset:{w2 * 14336 + i * 4096}")
    for i in range(4):
        V = 16 * i
        p(f"s_waitcnt lgkmcnt({12 - 4 * i})")
        for (x, y) in ((0, 4), (8, 12), (0, 8)):
            for k in (0, 2): p(f"v_pk_add_f32 {R(V + x + k, 2)}, {R(V + x + k, 2)}, {R(V + y + k, 2)}")
        for k in (0, 2):
            p(f"v_cvt_pk_bf16_f32 {R(V + 4)}, {R(V + k)}, {R(V + k + 1)}")
            unpack(p, V + k, V + k + 1, V + 4, sMSK)
        for k in range(4): p(f"v_mul_f32 {R(V + 4 + k)}, {S(sC)}, {R(V + k)}")
        for k in range(4): p(f"v_exp_f32 {R(V + 4 + k)}, {R(V + 4 + k)}")
        for k in range(4): p(f"v_add_f32 {R(V + 4 + k)}, 1.0, {R(V + 4 + k)}")
        for k in range(4): p(f"v_rcp_f32 {R(V + 4 + k)}, {R(V + 4 + k)}")
        for k in range(4): p(f"v_mul_f32 {R(V + k)}, {R(V + k)}, {R(V + 4 + k)}")
        p(f"v_cvt_pk_bf16_f32 {R(V + 8)}, {R(V)}, {R(V + 1)}")
        p(f"v_cvt_pk_bf16_f32 {R(V + 9)}, {R(V + 2)}, {R(V + 3)}")
        if i < 3:
            p(f"s_add_u32 s30, {S(sOUT)}, {i * 2048}")
        else:
            p(f"s_add_u32 s31, {S(sOUT)}, {i * 2048}")
            p(f"s_cmp_lt_u32 {S(sW)}, 2")
            p(f"s_cselect_b32 s30, s31, 0xf0000000")
        p(f"buffer_store_dwordx2 {R(V + 8, 2)}, {R(vL8)}, {SRD}, s30 offen sc1")
    p("s_waitcnt vmcnt(0)")
    for i in flag_ins(vF, vFO, S(sFL)): p(i)
    p(f"s_add_u32 {S(sFH)}, {S(sFH)}, {NP * 56 * 8}")
    p(f"s_add_u32 {S(sH)}, {S(sH)}, {NP * 112 * 1024}")
    p(f"s_add_u32 {S(sOUT)}, {S(sOUT)}, {NP * 56 * 512}")
    p(f"s_add_u32 {S(sFL)}, {S(sFL)}, {NP * 128}")
    p(f"s_add_u32 {S(sS)}, {S(sS)}, {NP}")
    p(f"s_cmp_lt_u32 {S(sS)}, 64")
    p(f"s_cbranch_scc1 {LOOP}")
    p(f"s_branch {END}")

def role_F(p, FAIL, END, NP=4):
    sJ, sS, sVX, sPT, sUF, sG, sX, sFV, sFG, sFP, sFU, sMSK, sLB = 16, 17, 18, 19, 20, 21, 22, 23, 24, 25, 26, 27, 44
    SX, SO = 32, 36
    Z, P, OA, G, XI = 0, 40, 80, 96, 98
    vL16, vL8, lane, vt, vLW, vLR, vXO = 100, 101, 102, 104, 106, 107, 108
    divmod_const(p, sROLE, 14, sS, sJ)
    make_srd(p, SX, K_X, 2048 * 896); make_srd(p, SO, K_OUT, 2048 * 896)
    lane_id(p, lane)
    p(f"v_lshlrev_b32 {R(vL16)}, 4, {R(lane)}")
    p(f"v_lshlrev_b32 {R(vL8)}, 3, {R(lane)}")
    a, b, n, g = 110, 111, 112, 113
    chain.lane_fields(p, lane, n, g)
    p(f"v_lshrrev_b32 {R(a)}, 3, {R(n)}")
    p(f"v_lshlrev_b32 {R(a)}, 4, {R(a)}")
    p(f"v_bfe_u32 {R(b)}, {R(n)}, 1, 1")
    p(f"v_lshl_add_u32 {R(a)}, {R(b)}, 3, {R(a)}")
    p(f"v_bfe_u32 {R(b)}, {R(n)}, 2, 1")
    p(f"v_lshl_add_u32 {R(a)}, {R(b)}, 2, {R(a)}")
    p(f"v_and_b32 {R(b)}, 1, {R(n)}")
    p(f"v_add_u32 {R(a)}, {R(a)}, {R(b)}")
    p(f"s_and_b32 s31, {S(sW)}, 1")
    p(f"s_lshl_b32 s30, s31, 1")
    p(f"v_add_u32 {R(a)}, s30, {R(a)}")
    p(f"v_mul_u32_u24 {R(a)}, 896, {R(a)}")
    p(f"v_lshl_add_u32 {R(vXO)}, {R(g)}, 3, {R(a)}")
    p(f"s_lshr_b32 s29, {S(sW)}, 1")
    p(f"s_lshl_b32 s30, {S(sJ)}, 1")
    p(f"s_add_u32 s29, s29, s30")
    p(f"s_mul_i32 s30, {S(sS)}, {32 * 896}")
    p(f"s_lshl_b32 s28, s29, 5")
    p(f"s_add_u32 {S(sX)}, s30, s28")
    p(f"s_mul_i32 s30, {S(sS)}, 28")
    p(f"s_add_u32 s30, s30, s29")
    p(f"s_lshl_b32 s30, s30, 1")
    p(f"s_add_u32 s30, s30, s31")
    p(f"s_lshl_b32 s30, s30, 9")
    p(f"s_add_u32 {S(sG)}, s30, {OFF_GF}")
    p(f"s_lshl_b32 s30, {S(sS)}, 4")
    p(f"s_lshl_b32 s31, {S(sW)}, 2")
    p(f"s_add_u32 s30, s30, s31")
    p(f"s_lshl_b32 s31, s30, 5")
    p(f"s_add_u32 {S(sFV)}, s31, {FL_VX}")
    p(f"s_lshl_b32 s31, s30, 4")
    p(f"s_add_u32 {S(sFP)}, s31, {FL_PT}")
    p(f"s_mul_i32 s30, s30, 28")
    p(f"s_lshl_b32 s31, {S(sJ)}, 1")
    p(f"s_add_u32 s30, s30, s31")
    p(f"s_lshl_b32 s30, s30, 10")
    p(f"s_add_u32 {S(sVX)}, s30, {OFF_VX}")
    p(f"s_mul_i32 s30, {S(sS)}, {PT_STRIDE}")
    p(f"s_add_u32 {S(sPT)}, s30, {OFF_PT}")
    p(f"s_mul_i32 s30, {S(sS)}, 14")
    p(f"s_add_u32 s30, s30, {S(sJ)}")
    p(f"s_lshl_b32 s30, s30, 2")
    p(f"s_add_u32 s30, s30, {S(sW)}")
    p(f"s_lshl_b32 s31, s30, 3")
    p(f"s_add_u32 {S(sFU)}, s31, {FL_UF}")
    p(f"s_lshl_b32 s30, s30, 11")
    p(f"s_add_u32 {S(sUF)}, s30, {OFF_UF}")
    p(f"s_lshl_b32 s30, {S(sS)}, 7")
    p(f"s_add_u32 {S(sFG)}, s30, {FL_GF}")
    p(f"s_mov_b32 {S(sMSK)}, 0xffff0000")
    p(f"s_mov_b32 {S(sLB)}, 0")
    p("s_barrier")
    LOOP = p.newlabel("f"); p.label(LOOP)
    p(f"s_lshl_b32 s30, {S(sW)}, 12")
    p(f"s_add_u32 s30, s30, {S(sLB)}")
    p(f"v_add_u32 {R(vLW)}, s30, {R(vL16)}")
    p(f"s_lshl_b32 s30, {S(sW)}, 10")
    p(f"s_add_u32 s30, s30, {S(sLB)}")
    p(f"v_add_u32 {R(vLR)}, s30, {R(vL16)}")
    wait_flags(p, vL8, S(sFV), 16, vt, FAIL, sleep=8)
    for hh in range(4):
        p(f"s_add_u32 s30, {S(sVX)}, {hh * 28672}")
        for ct in range(2):
            p(f"buffer_load_dwordx4 {R(Z + 20 * ct + 4 * hh, 4)}, {R(vL16)}, {SRD}, s30 offen offset:{1024 * ct} sc1")
    p(f"buffer_load_dwordx2 {R(XI, 2)}, {R(vXO)}, {S(SX, 4)}, {S(sX)} offen")
    wait_flags(p, vL8, S(sFG), 16, vt, FAIL, sleep=8)
    p(f"buffer_load_dwordx2 {R(G, 2)}, {R(vL8)}, {SRD}, {S(sG)} offen sc1")
    wait_flags(p, vL8, S(sFU), 1, vt, FAIL, sleep=2)
    for ct in range(2):
        p(f"buffer_load_dwordx4 {R(Z + 20 * ct + 16, 4)}, {R(vL16)}, {SRD}, {S(sUF)} offen offset:{1024 * ct} sc1")
    wait_flags(p, vL8, S(sFP), 8, vt, FAIL, sleep=2)
    p(f"s_lshl_b32 s30, {S(sW)}, 13")
    p(f"s_add_u32 s30, s30, {S(sPT)}")
    p(f"s_add_u32 s31, s30, 4096")
    for hh in range(4):
        for tau in range(2):
            p(f"buffer_load_dwordx4 {R(P + 20 * tau + 4 * hh, 4)}, {R(vL16)}, {SRD}, {'s30' if hh < 2 else 's31'} offen offset:{((hh & 1) * 2 + tau) * 1024} sc1")
    p(f"s_lshl_b32 s30, {S(sW)}, 11")
    p(f"s_add_u32 s30, s30, {S(sPT)}")
    p(f"s_add_u32 s30, s30, 32768")
    for tau in range(2):
        p(f"buffer_load_dwordx4 {R(P + 20 * tau + 16, 4)}, {R(vL16)}, {SRD}, s30 offen offset:{tau * 1024} sc1")
    for k in range(5):
        p(f"s_waitcnt vmcnt({8 - 2 * k if k < 4 else 0})")
        for ct in range(2):
            for tau in range(2):
                o = OA + 4 * (2 * ct + tau)
                p(f"v_mfma_f32_16x16x32_bf16 {R(o, 4)}, {R(Z + 20 * ct + 4 * k, 4)}, {R(P + 20 * tau + 4 * k, 4)}, {'0' if k == 0 else R(o, 4)}")
    for u in range(4): p(f"ds_write_b128 {R(vLW)}, {R(OA + 4 * u, 4)} offset:{u * 1024}")
    p("s_waitcnt lgkmcnt(0)")
    p("s_barrier")
    V = OA
    for w2 in range(4): p(f"ds_read_b128 {R(V + 4 * w2, 4)}, {R(vLR)} offset:{w2 * 4096}")
    p("s_waitcnt lgkmcnt(0)")
    for (x, y) in ((0, 4), (8, 12), (0, 8)):
        for k in (0, 2): p(f"v_pk_add_f32 {R(V + x + k, 2)}, {R(V + x + k, 2)}, {R(V + y + k, 2)}")
    for k in (0, 2):
        p(f"v_cvt_pk_bf16_f32 {R(V + 4)}, {R(V + k)}, {R(V + k + 1)}")
        unpack(p, V + k, V + k + 1, V + 4, sMSK)
        unpack(p, V + 6, V + 7, G + (k >> 1), sMSK)
        p(f"v_pk_mul_f32 {R(V + k, 2)}, {R(V + k, 2)}, {R(V + 6, 2)}")
        p(f"v_cvt_pk_bf16_f32 {R(V + 4)}, {R(V + k)}, {R(V + k + 1)}")
        unpack(p, V + k, V + k + 1, V + 4, sMSK)
        unpack(p, V + 6, V + 7, XI + (k >> 1), sMSK)
        p(f"v_pk_add_f32 {R(V + k, 2)}, {R(V + k, 2)}, {R(V + 6, 2)}")
        p(f"v_cvt_pk_bf16_f32 {R(V + 8 + (k >> 1))}, {R(V + k)}, {R(V + k + 1)}")
    p(f"buffer_store_dwordx2 {R(V + 8, 2)}, {R(vXO)}, {S(SO, 4)}, {S(sX)} offen")
    p(f"s_xor_b32 {S(sLB)}, {S(sLB)}, 16384")
    p(f"s_add_u32 {S(sVX)}, {S(sVX)}, {NP * 16 * 28672}")
    p(f"s_add_u32 {S(sPT)}, {S(sPT)}, {NP * PT_STRIDE}")
    p(f"s_add_u32 {S(sUF)}, {S(sUF)}, {NP * 56 * 2048}")
    p(f"s_add_u32 {S(sG)}, {S(sG)}, {NP * 56 * 512}")
    p(f"s_add_u32 {S(sX)}, {S(sX)}, {NP * 32 * 896}")
    p(f"s_add_u32 {S(sFV)}, {S(sFV)}, {NP * 512}")
    p(f"s_add_u32 {S(sFG)}, {S(sFG)}, {NP * 128}")
    p(f"s_add_u32 {S(sFP)}, {S(sFP)}, {NP * 256}")
    p(f"s_add_u32 {S(sFU)}, {S(sFU)}, {NP * 56 * 8}")
    p(f"s_add_u32 {S(sS)}, {S(sS)}, {NP}")
    p(f"s_cmp_lt_u32 {S(sS)}, 64")
    p(f"s_cbranch_scc1 {LOOP}")
    p(f"s_branch {END}")
```

```python
import sys
from common import *
import phase0
NAME = "recurrent_scan__memory_aug_recurrent_mem_tr__glu_gated_glu__prompt_kernel"
LDS = 144384
HEAD = open("header.txt").read()
def wrap(body, lds=LDS):
    return HEAD.replace("@LDS@", str(lds)) + f""".amdgcn_target "amdgcn-amd-amdhsa--gfx950"
.text
.globl {NAME}
.p2align 8
.type {NAME},@function
{NAME}:
""" + "\n".join(body) + f"""
.section .rodata,"a"
.p2align 6
.amdhsa_kernel {NAME}
  .amdhsa_next_free_vgpr 512
  .amdhsa_next_free_sgpr 102
  .amdhsa_accum_offset 256
  .amdhsa_group_segment_fixed_size 0
  .amdhsa_kernarg_size 112
  .amdhsa_user_sgpr_count 2
  .amdhsa_user_sgpr_kernarg_segment_ptr 1
  .amdhsa_system_sgpr_workgroup_id_x 1
  .amdhsa_float_denorm_mode_32 3
.end_amdhsa_kernel
"""
def build(roles=("p0",), **opt):
    p = Prog()
    END, FAIL, P0D = "L_end", "L_fail", "L_p0done"
    if opt.get("rt"): p("s_memrealtime s[60:61]")
    prologue(p, END, FAIL)
    if opt.get("rt"):
        p(f"s_lshl_b32 s42, {S(sXCC)}, 5"); p(f"s_add_u32 s42, s42, {S(sRANK)}"); p("s_lshl_b32 s42, s42, 2")
        p(f"s_add_u32 s42, s42, {S(sW)}"); p("s_lshl_b32 s42, s42, 6"); p(f"s_add_u32 s42, s42, {OFF_DBG}")
        p("s_memrealtime s[62:63]"); p("s_waitcnt lgkmcnt(0)")
        p("v_mov_b32 v114, s60"); p("v_mov_b32 v115, 0"); p("v_mov_b32 v116, s62")
        p(f"buffer_store_dword v114, v115, {SRD}, s42 offen")
        p(f"buffer_store_dword v116, v115, {SRD}, s42 offen offset:24")
        p("s_waitcnt vmcnt(0)")
    if "p0" in roles:
        phase0.phase0(p, FAIL, P0D)
    else:
        get_epoch(p, FAIL, 4)
    p.label(P0D)
    if len(roles) > 1 or "p0" not in roles:
        import roles as R_
        R_.dispatch(p, roles, END, FAIL, opt)
    p("s_endpgm")
    p.label(FAIL)
    p("s_waitcnt vmcnt(0) lgkmcnt(0)")
    p(f"s_load_dwordx2 s[14:15], s[0:1], {K_DBG}")
    p("v_mov_b32 v0, 8"); p("v_mov_b32 v1, 1"); p("s_mov_b64 exec, 1")
    p("s_waitcnt lgkmcnt(0)")
    p("global_atomic_add v0, v1, s[14:15] sc1")
    p.label(END)
    p("s_endpgm")
    out, st = finalize(p, "kernel")
    return wrap(out), st
if __name__ == "__main__":
    asm, st = build(("p0", "X", "Y", "VW", "TW", "GU", "GD", "F"))
    print(st)
    open("out.s", "w").write(asm)
```

```python
from asmlib import *
from layout import *

from common import SRD, sW, sROLE
POLL_LIMIT = 400000
OPT = {}

def lane_fields(p, vlane, vn, vg):
    p(f"v_and_b32 {R(vn)}, 15, {R(vlane)}")
    p(f"v_lshrrev_b32 {R(vg)}, 4, {R(vlane)}")

LD = {4: "buffer_load_dwordx4", 2: "buffer_load_dwordx2", 1: "buffer_load_dword"}
def poll(p, loads, soff, tmp, scnt, fail, spec=None, back=0):
    L = p.newlabel("poll")
    p(f"s_mov_b32 {S(scnt)}, 0")
    if back:
        L0 = p.newlabel("pollin"); p(f"s_branch {L0}")
        p.label(L); p(f"s_sleep {back}"); p.label(L0)
    else:
        p.label(L)
    for r, n, va, imm in loads:
        p(f"{LD[n]} {R(r, n)}, {R(va)}, {SRD}, {S(soff)} offen offset:{imm} {OPT.get('pollmod', 'sc1')}")
    p(f"s_add_u32 {S(scnt)}, {S(scnt)}, 1")
    p(f"s_cmp_gt_u32 {S(scnt)}, {POLL_LIMIT}")
    p(f"s_cbranch_scc1 {fail}")
    regs = [r for r, n, va, imm in loads]
    if OPT.get('fullcheck'): regs = [r + k for r, n, va, imm in loads for k in range(n)]
    spec = list(spec or [])
    if spec and len(loads) == 2 and len(spec) == 2:
        p("s_waitcnt vmcnt(1)"); p(spec[0]); p("s_waitcnt vmcnt(0)"); p(spec[1])
    else:
        p("s_waitcnt vmcnt(0)")
        for i in spec: p(i)
    if len(regs) == 1:
        p(f"v_cmp_eq_u32 vcc, -1, {R(regs[0])}")
    else:
        cur, rest = regs[0], regs[1:]
        while rest:
            if len(rest) >= 2:
                p(f"v_max3_u32 {R(tmp)}, {R(cur)}, {R(rest[0])}, {R(rest[1])}"); rest = rest[2:]
            else:
                p(f"v_max_u32 {R(tmp)}, {R(cur)}, {R(rest[0])}"); rest = []
            cur = tmp
        p(f"v_cmp_eq_u32 vcc, -1, {R(tmp)}")
    p(f"s_cbranch_vccnz {L}")

def check(p, regs, tmp):
    if len(regs) == 1:
        p(f"v_cmp_eq_u32 vcc, -1, {R(regs[0])}"); return
    cur, rest = regs[0], regs[1:]
    while rest:
        if len(rest) >= 2:
            p(f"v_max3_u32 {R(tmp)}, {R(cur)}, {R(rest[0])}, {R(rest[1])}"); rest = rest[2:]
        else:
            p(f"v_max_u32 {R(tmp)}, {R(cur)}, {R(rest[0])}"); rest = []
        cur = tmp
    p(f"v_cmp_eq_u32 vcc, -1, {R(tmp)}")

def poll2(p, setA, setB, soff, tmp, scnt, fail, okA):
    def issue(ls):
        for r, n, va, imm in ls:
            p(f"{LD[n]} {R(r, n)}, {R(va)}, {SRD}, {S(soff)} offen offset:{imm} sc1")
    L = p.newlabel("poll")
    nl = len(setA)
    p(f"s_mov_b32 {S(scnt)}, 0")
    issue(setA)
    if OPT.get('pgap'): p(f"s_nop {OPT['pgap']}"); p(f"s_nop {OPT['pgap']}")
    p.label(L)
    issue(setB)
    p(f"s_add_u32 {S(scnt)}, {S(scnt)}, 1")
    p(f"s_waitcnt vmcnt({nl})")
    check(p, [r for r, n, va, imm in setA], tmp)
    p(f"s_cbranch_vccz {okA}")
    issue(setA)
    p(f"s_cmp_gt_u32 {S(scnt)}, {POLL_LIMIT}")
    p(f"s_cbranch_scc1 {fail}")
    p(f"s_waitcnt vmcnt({nl})")
    check(p, [r for r, n, va, imm in setB], tmp)
    p(f"s_cbranch_vccnz {L}")

def gather_mem(p, C, fail):
    w3, go = p.newlabel("gw3"), p.newlabel("ggo")
    p(f"s_cmp_eq_u32 {S(sW)}, 3")
    p(f"s_cbranch_scc1 {w3}")
    poll(p, [(C.GA, 4, C.vG0, 0), (C.GA + 4, 4, C.vG1, 0)], C.sMEM, C.t0, C.sCNT, fail,
         [f"ds_write_b128 {R(C.vG0)}, {R(C.GA, 4)}", f"ds_write_b128 {R(C.vG1)}, {R(C.GA + 4, 4)}"], back=OPT.get('bm', 0))
    p(f"s_branch {go}") if False else None
    tail = p.newlabel("gtail")
    p.label(go)
    p("s_waitcnt lgkmcnt(0)")
    return w3, go

def gather_mem_w3(p, C, fail, w3, go):
    p.label(w3)
    poll(p, [(C.GA, 4, C.vG0, 0)], C.sMEM, C.t0, C.sCNT, fail, [f"ds_write_b128 {R(C.vG0)}, {R(C.GA, 4)}"], back=OPT.get('bm', 0))
    p(f"s_branch {go}")

XORD = (0, 4, 1, 2, 3, 5, 6)
def chunk_of(p, k, shift):
    p(f"s_add_u32 s30, {S(sW)}, {k}")
    p(f"s_sub_u32 s31, s30, 7")
    p(f"s_cmp_ge_u32 s30, 7")
    p(f"s_cselect_b32 s30, s31, s30")
    p(f"s_lshl_b32 s30, s30, {shift}")
def chunk_addrs(p, C):
    p(f"v_add_u32 {R(C.vG1W)}, 4096, {R(C.vG0)}")
    for dst, k in ((C.vG1, 4), (C.vR5, 5), (C.vR6, 6)):
        chunk_of(p, k, 10)
        p(f"v_add_u32 {R(dst)}, s30, {R(C.vL16)}")
def staged_reads(C):
    MO = C.MO
    return [f"ds_read_b128 {R(MO + 8, 4)}, {R(C.vG0)} offset:1024", f"ds_read_b128 {R(MO + 12, 4)}, {R(C.vG0)} offset:2048",
            f"ds_read_b128 {R(MO + 16, 4)}, {R(C.vG0)} offset:3072", f"ds_read_b128 {R(MO + 20, 4)}, {R(C.vR5)}",
            f"ds_read_b128 {R(MO + 24, 4)}, {R(C.vR6)}"]

def load_weights(p, regs, soff_sgpr, vl16):
    for f, r in enumerate(regs):
        for hf in range(2):
            oo = f * 2048 + hf * 1024
            if oo % 4096 == 0: p(f"s_add_u32 s30, {S(soff_sgpr)}, {oo}")
            p(f"buffer_load_dwordx4 {R(r + 4 * hf, 4)}, {R(vl16)}, {SRD}, s30 offen offset:{oo % 4096} sc1")

def sparse_index(p, vlane, idx, a, b):
    p(f"v_and_b32 {R(a)}, 8, {R(vlane)}")
    p(f"v_mov_b32 {R(idx)}, 0x44444444")
    p(f"v_mov_b32 {R(b)}, 0xeeeeeeee")
    p(f"v_cmp_ne_u32 vcc, 0, {R(a)}")
    p(f"v_cndmask_b32 {R(idx)}, {R(idx)}, {R(b)}, vcc")

def half_sum(a, b):
    return [f"v_permlane32_swap_b32 {R(a + r)}, {R(b + r)}" for r in range(4)] + \
           [f"v_pk_add_f32 {R(a + r, 2)}, {R(a + r, 2)}, {R(b + r, 2)}" for r in (0, 2)]

def allreduce32(p, op, m, t):
    for rot in (8, 4, 2, 1):
        p(f"{op}_dpp {R(m)}, {R(m)}, {R(m)} row_ror:{rot} row_mask:0xf bank_mask:0xf")
    p(f"v_mov_b32 {R(t)}, {R(m)}")
    p(f"v_permlane16_swap_b32 {R(m)}, {R(t)}")
    p(f"{op} {R(m)}, {R(m)}, {R(t)}")

class XR:
    MO = 0; TA = 28; TK = 56; MK = 84; GA = 84; IDX = 100
    vG0 = 101; vG1 = 102; vL16 = 103; vMK = 104; vMKL = 105; SEL = 106
    vSR = 110; vPO = 111; vSW2 = 112; vSW = 113; t0 = 114; t1 = 115; t2 = 116; t3 = 117; vKL = 98
    vG1W = 99; vR5 = 118; vR6 = 119; GB = 84; vMW = 116; MWV = 117
    RS = 208
    LDS_MEMS = 0; LDS_SP = 8192; LDS_K = 15360; LDS_END = 15360 + 4 * 7168
    @staticmethod
    def W(t, jc):
        f = 7 * t + jc
        return 256 + 8 * f if f < 32 else 120 + 8 * (f - 32)
    @staticmethod
    def key(kap, pp):
        if pp < 3: return XR.TK + 4 * (3 * kap + pp)
        return XR.TK + 24 + 2 * kap
    sMEM = 16; sPX = 17; sK0 = 18; sKM = 19; sSTEP = 20; sCNT = 24; sWB = 25; sHI = 22; sMW = 26

def x_setup(p, vlane):
    X = XR
    n, g, a, b = X.t0, X.t1, X.t2, X.t3
    lane_fields(p, vlane, n, g)
    p(f"v_lshlrev_b32 {R(X.vL16)}, 4, {R(vlane)}")
    p(f"s_lshl_b32 s30, {S(sW)}, 10")
    p(f"v_add_u32 {R(X.vG0)}, s30, {R(X.vL16)}")
    chunk_addrs(p, X)
    sparse_index(p, vlane, X.IDX, a, b)
    p(f"v_lshrrev_b32 {R(a)}, 2, {R(n)}")
    p(f"v_and_b32 {R(b)}, 1, {R(n)}")
    p(f"v_lshl_add_u32 {R(a)}, {R(a)}, 1, {R(b)}")
    p(f"v_lshlrev_b32 {R(a)}, 4, {R(a)}")
    p(f"s_mul_i32 s30, {S(sW)}, {14 * 128}")
    p(f"v_add_u32 {R(a)}, s30, {R(a)}")
    p(f"v_lshl_add_u32 {R(X.vMK)}, {R(g)}, 7, {R(a)}")
    p(f"v_lshrrev_b32 {R(b)}, 1, {R(g)}")
    p(f"v_lshl_add_u32 {R(a)}, {R(b)}, 7, {R(a)}")
    p(f"v_and_b32 {R(b)}, 1, {R(g)}")
    p(f"v_lshl_add_u32 {R(a)}, {R(b)}, 3, {R(a)}")
    p(f"v_add_u32 {R(X.vMKL)}, {12 * 128}, {R(a)}")
    p(f"v_lshrrev_b32 {R(a)}, 2, {R(n)}")
    p(f"v_xor_b32 {R(a)}, {R(a)}, {R(g)}")
    p(f"v_and_b32 {R(a)}, 1, {R(a)}")
    p(f"v_lshrrev_b32 {R(b)}, 3, {R(n)}")
    p(f"v_lshlrev_b32 {R(b)}, 1, {R(b)}")
    p(f"v_bfe_u32 v0, {R(n)}, 1, 1")
    p(f"v_add_u32 {R(b)}, {R(b)}, v0")
    p(f"v_lshl_add_u32 {R(b)}, {R(a)}, 2, {R(b)}")
    p(f"v_and_b32 v0, 1, {R(n)}")
    p(f"v_lshlrev_b32 v0, 4, v0")
    p(f"v_mov_b32 v1, 0x3f80")
    p(f"v_lshlrev_b32 v0, v0, v1")
    for u in range(4):
        p(f"v_cmp_eq_u32 vcc, {u}, {R(b)}")
        p(f"v_cndmask_b32 {R(X.SEL + u)}, 0, v0, vcc")
    p(f"s_mul_i32 s30, {S(sW)}, 7168")
    p(f"s_add_u32 {S(X.sKM)}, s30, {X.LDS_K}")
    p(f"v_add_u32 {R(X.vKL)}, {S(X.sKM)}, {R(X.vL16)}")
    p(f"s_mul_i32 s30, {S(sW)}, {8 * X.RS}")
    p(f"s_add_u32 s30, s30, {X.LDS_SP}")
    p(f"v_and_b32 {R(a)}, 7, {R(n)}")
    p(f"v_mul_u32_u24 {R(a)}, {X.RS}, {R(a)}")
    p(f"v_add_u32 {R(a)}, s30, {R(a)}")
    p(f"v_lshrrev_b32 {R(b)}, 3, {R(n)}")
    p(f"v_lshl_add_u32 {R(X.vSW)}, {R(b)}, 6, {R(a)}")
    p(f"v_lshl_add_u32 {R(X.vSW)}, {R(g)}, 4, {R(X.vSW)}")
    p(f"v_mul_u32_u24 {R(b)}, 48, {R(b)}")
    p(f"v_add_u32 {R(a)}, {R(a)}, {R(b)}")
    p(f"v_lshl_add_u32 {R(a)}, {R(g)}, 3, {R(a)}")
    p(f"v_add_u32 {R(X.vSW2)}, 128, {R(a)}")
    p(f"v_and_b32 {R(a)}, 7, {R(n)}")
    p(f"v_mul_u32_u24 {R(a)}, {X.RS}, {R(a)}")
    p(f"v_add_u32 {R(a)}, s30, {R(a)}")
    p(f"v_mov_b32 v0, 0xff800000")
    p(f"v_mov_b32 v1, 0xff800000")
    p(f"ds_write_b64 {R(a)}, v[0:1] offset:160")
    e, i = n, g
    p(f"v_and_b32 {R(e)}, 31, {R(vlane)}")
    p(f"v_lshrrev_b32 {R(i)}, 5, {R(vlane)}")
    p(f"s_lshl_b32 s31, {S(sW)}, 1")
    p(f"v_add_u32 {R(i)}, s31, {R(i)}")
    p(f"v_mul_u32_u24 {R(a)}, {X.RS}, {R(i)}")
    p(f"v_min_u32 {R(b)}, 20, {R(e)}")
    p(f"v_lshl_add_u32 {R(a)}, {R(b)}, 3, {R(a)}")
    p(f"v_add_u32 {R(X.vSR)}, {X.LDS_SP}, {R(a)}")
    p(f"v_lshrrev_b32 {R(a)}, 2, {R(e)}")
    p(f"v_lshlrev_b32 {R(a)}, 7, {R(a)}")
    p(f"v_lshl_add_u32 {R(a)}, {R(i)}, 4, {R(a)}")
    p(f"v_and_b32 {R(b)}, 3, {R(e)}")
    p(f"v_lshl_add_u32 {R(a)}, {R(b)}, 2, {R(a)}")
    p(f"s_lshl_b32 s30, {S(sROLE)}, 9")
    p(f"v_add_u32 {R(X.vPO)}, s30, {R(a)}")
    p(f"s_lshr_b32 s30, {S(sROLE)}, 2")
    p(f"s_lshl_b32 s30, s30, 9")
    p(f"s_and_b32 s31, {S(sROLE)}, 1")
    p(f"s_lshl_b32 s31, s31, 8")
    p(f"s_add_u32 s30, s30, s31")
    p(f"s_lshr_b32 s31, {S(sROLE)}, 1")
    p(f"s_and_b32 s31, s31, 1")
    p(f"s_lshl_b32 s31, s31, 6")
    p(f"s_add_u32 s30, s30, s31")
    p(f"s_add_u32 s30, s30, 8192")
    p(f"v_lshrrev_b32 {R(a)}, 1, {R(e)}")
    p(f"v_and_b32 {R(a)}, 1, {R(a)}")
    p(f"v_lshlrev_b32 {R(a)}, 7, {R(a)}")
    p(f"v_lshl_add_u32 {R(a)}, {R(i)}, 3, {R(a)}")
    p(f"v_and_b32 {R(b)}, 1, {R(e)}")
    p(f"v_lshl_add_u32 {R(a)}, {R(b)}, 2, {R(a)}")
    p(f"v_add_u32 {R(a)}, s30, {R(a)}")
    p(f"v_cmp_le_u32 vcc, 16, {R(e)}")
    p(f"v_cndmask_b32 {R(X.vPO)}, {R(X.vPO)}, {R(a)}, vcc")
    p(f"v_mov_b32 {R(a)}, 0x80000000")
    p(f"v_cmp_le_u32 vcc, 20, {R(e)}")
    p(f"v_cndmask_b32 {R(X.vPO)}, {R(X.vPO)}, {R(a)}, vcc")
    p(f"s_lshl_b32 s30, {S(sROLE)}, 2")
    p(f"s_add_u32 s30, s30, {S(sW)}")
    p(f"s_lshl_b32 s31, s30, 7")
    p(f"s_cmp_lt_u32 s30, 56")
    p(f"s_cselect_b32 s31, s31, 0x80000000")
    p(f"v_lshlrev_b32 {R(a)}, 2, {R(vlane)}")
    p(f"v_add_u32 {R(a)}, s31, {R(a)}")
    p(f"v_mov_b32 {R(b)}, 0x80000000")
    p(f"v_cmp_gt_u32 vcc, 32, {R(vlane)}")
    p(f"v_cndmask_b32 {R(X.vMW)}, {R(b)}, {R(a)}, vcc")
    p(f"s_mov_b32 {S(X.sMW)}, {OFF_MEMW}")
    p(f"s_mov_b32 {S(X.sMEM)}, {OFF_MEM}")
    p(f"s_mov_b32 {S(X.sPX)}, {OFF_PX}")
    p(f"s_mul_i32 s30, {S(sW)}, 7168")
    p(f"s_add_u32 {S(X.sK0)}, s30, {OFF_XK}")
    p(f"s_mov_b32 {S(X.sSTEP)}, 0")
    p(f"s_mov_b32 {S(X.sHI)}, 0xff00ff00")
    p(f"s_mov_b32 {S(X.sHI + 1)}, 0xff00ff00")

def x_load_weights(p):
    X = XR
    p(f"s_mul_i32 s31, {S(sROLE)}, {28 * 14336}")
    p(f"s_mul_i32 s30, {S(sW)}, {7 * 14336}")
    p(f"s_add_u32 s31, s31, s30")
    p(f"s_add_u32 {S(X.sWB)}, s31, {OFF_F}")
    for sg, k in enumerate(XORD):
        chunk_of(p, k, 11)
        p(f"s_add_u32 s29, s30, {S(X.sWB)}")
        for t in range(7):
            if t: p(f"s_add_u32 s29, s29, 14336")
            for hf in range(2):
                p(f"buffer_load_dwordx4 {R(X.W(t, sg) + 4 * hf, 4)}, {R(X.vL16)}, {SRD}, s29 offen offset:{hf * 1024} sc1")

def x_keys_dma(p):
    X = XR
    if OPT.get('no_keys'): return []
    out = [f"s_mov_b32 m0, {S(X.sKM)}", f"s_add_u32 s30, {S(X.sK0)}, 4096"]
    for f in range(4): out.append(f"buffer_load_dwordx4 {R(X.vL16)}, {SRD}, {S(X.sK0)} offen offset:{f * 1024} sc1 lds")
    out += [f"s_add_u32 m0, {S(X.sKM)}, 4096", f"s_add_u32 {S(X.sK0)}, {S(X.sK0)}, {4 * 7168}"]
    for f in range(3): out.append(f"buffer_load_dwordx4 {R(X.vL16)}, {SRD}, s30 offen offset:{f * 1024} sc1 lds")
    return out
def x_keys_read(p):
    X = XR
    for f in range(7):
        p(f"ds_read_b128 {R(X.TK + 4 * f, 4)}, {R(X.vKL)} offset:{f * 1024}")

def role_X(p, fail, stamp=None, nsteps=63):
    X = XR
    MO, TA, MK = X.MO, X.TA, X.MK
    st = stamp or (lambda p, k: None)
    for i in x_keys_dma(p): p(i)
    for r in range(28): p(f"v_mov_b32 {R(TA + r)}, 0")
    p("s_waitcnt vmcnt(0)")
    x_keys_read(p)
    LOOP = p.newlabel("xloop"); p.label(LOOP)
    def smf(t, sg, a=None):
        a = MO + 4 * sg if a is None else a
        return f"v_smfmac_f32_16x16x64_bf16 {R(TA + 4 * t, 4)}, {R(a, 4)}, {R(X.W(t, sg), 8)}, {R(X.IDX)}"
    def wr(g): return [f"ds_write_b128 {R(X.vG0)}, {R(g, 4)}", f"ds_write_b128 {R(X.vG1W)}, {R(g + 4, 4)}"]
    rd = staged_reads(X)
    kbar = OPT.get('kbar', 5)
    def head(g, written):
        st(p, 6)
        if not written:
            for i in wr(g): p(i)
        for t in range(7):
            p(smf(t, 0, g))
            if t == kbar:
                p("s_waitcnt lgkmcnt(0)"); p("s_barrier")
                st(p, 7)
                p(rd[0])
            elif t > kbar and t - kbar < 5 and t - kbar <= 6 - kbar: p(rd[t - kbar])
        rest = rd[7 - kbar:] + [f"v_and_b32 {R(X.MWV)}, 0x1ffc, {R(X.vMW)}", f"ds_read_b32 {R(X.MWV)}, {R(X.MWV)}"]
        for t in range(7):
            p(smf(t, 1, g + 4))
            if rest: p(rest.pop(0))
    loadsA = [(MO, 4, X.vG0, 0), (MO + 4, 4, X.vG1, 0)]
    if OPT.get('xp', 1) == 1:
        spec = OPT.get('spec', 1)
        poll(p, loadsA, X.sMEM, X.t0, X.sCNT, fail, wr(MO) if spec else None, back=OPT.get('bx', 0))
        head(MO, spec)
        ool = None
    else:
        okA, join = p.newlabel("xokA"), p.newlabel("xjoin")
        poll2(p, loadsA, [(X.GB, 4, X.vG0, 0), (X.GB + 4, 4, X.vG1, 0)], X.sMEM, X.t0, X.sCNT, fail, okA)
        head(X.GB, False)
        p.label(join)
        def ool(p):
            p.label(okA); head(MO, False); p(f"s_branch {join}")
    st(p, 8)
    dma = x_keys_dma(p)
    if not OPT.get('no_touch'):
        dma.append(f"s_add_u32 s31, {S(X.sPX)}, {PX_STRIDE}")
        dma.append(f"buffer_load_dword {R(X.t1)}, {R(X.vPO)}, {SRD}, s31 offen offset:0 sc1")
    dma.insert(OPT.get('mwpos', 3), f"buffer_store_dword {R(X.MWV)}, {R(X.vMW)}, {SRD}, {S(X.sMW)} offen sc1")
    fill = {k: [] for k in range(14, 49)}
    def cvt(d, a): return f"v_cvt_pk_bf16_f32 {R(d)}, {R(a)}, {R(a + 1)}"
    def pair_pre(pp):
        a, b = TA + 8 * pp, TA + 8 * pp + 4
        return [cvt(a, a), cvt(a + 1, a + 2), cvt(a + 2, b), cvt(a + 3, b + 2)]
    def pair_tr(pp):
        a, b = TA + 8 * pp, TA + 8 * pp + 4
        return f"v_mfma_f32_16x16x32_bf16 {R(b, 4)}, {R(a, 4)}, {R(X.SEL, 4)}, 0"
    def pair_post(pp):
        a, b = TA + 8 * pp, TA + 8 * pp + 4
        return [cvt(a, b), cvt(a + 1, b + 2)] + \
               [f"v_mov_b32_dpp {R(a + 2 + r)}, {R(a + r)} row_ror:8 row_mask:0xf bank_mask:0xf" for r in range(2)]
    kk = OPT.get('kpos', 14); step = OPT.get('kstep', 4)
    for i in dma:
        fill[kk].append(i)
        if i.startswith("buffer"): kk += step
    if OPT.get('xp', 1) == 2: fill[19] += ["s_waitcnt vmcnt(%d)" % sum(1 for k in range(14, 20) for i in fill[k] if i.startswith("buffer"))]
    fill[19] += [f"ds_read_b128 {R(MK, 4)}, {R(X.vMK)}"]
    fill[20] += [f"ds_read_b128 {R(MK + 4, 4)}, {R(X.vMK)} offset:512"]
    fill[21] += [f"ds_read_b128 {R(MK + 8, 4)}, {R(X.vMK)} offset:1024"]
    fill[22] += [f"ds_read_b64 {R(MK + 12, 2)}, {R(X.vMKL)}"]
    pre0, pre1, pre2 = pair_pre(0), pair_pre(1), pair_pre(2)
    pst0, pst1, pst2 = pair_post(0), pair_post(1), pair_post(2)
    for k, i in ((24, pre0[0]), (25, pre0[1]), (28, pre0[2]), (29, pre0[3]), (31, pair_tr(0)),
                 (34, pre1[0]), (35, pre1[1]), (37, pst0[0]), (38, pst0[1]), (39, pre1[2]), (40, pre1[3]),
                 (41, pst0[2]), (42, pst0[3]), (42, pair_tr(1)), (44, pre2[0]), (45, pre2[1]),
                 (47, pre2[2]), (48, pre2[3])):
        fill[k].append(i)
    for k in range(14, 49):
        t, sg = divmod(k - 14, 5)
        if t == 0: p(f"s_waitcnt lgkmcnt({5 - sg})")
        if k == 18: p("s_waitcnt lgkmcnt(0)")
        p(smf(t, sg + 2))
        for i in fill[k]: p(i)
        if k == 18: st(p, 9)
        if k == 41: st(p, 10)
    st(p, 3)
    t6 = TA + 24
    SA = MO + 16
    def smm(kap, pp, first=False):
        key = X.key(kap, pp) if kap < 2 else MK + 4 * pp
        c = "0" if first else R(SA + 4 * kap, 4)
        if pp < 3: return f"v_mfma_f32_16x16x32_bf16 {R(SA + 4 * kap, 4)}, {R(key, 4)}, {R(TA + 8 * pp, 4)}, {c}"
        return f"v_mfma_f32_16x16x16_bf16 {R(SA + 4 * kap, 4)}, {R(key, 2)}, {R(t6, 2)}, {c}"
    p("s_waitcnt lgkmcnt(0)")
    p(smm(0, 0, True))
    p(pair_tr(2))
    p(pst1[0]); p(pst1[1])
    p(smm(1, 0, True))
    p(pst1[2]); p(pst1[3])
    p(smm(2, 0, True))
    p(cvt(t6, t6)); p(cvt(t6 + 1, t6 + 2))
    p(smm(0, 1))
    p(f"v_mfma_f32_16x16x16_bf16 {R(MO, 4)}, {R(t6, 2)}, {R(X.SEL, 2)}, 0")
    p(pst2[0]); p(pst2[1])
    p(smm(1, 1))
    p(pst2[2]); p(pst2[3])
    p(smm(2, 1))
    p(smm(0, 2)); p(smm(1, 2))
    p(cvt(t6, MO)); p(cvt(t6 + 1, MO + 2))
    p(smm(2, 2))
    p(smm(2, 3)); p(smm(0, 3)); p(smm(1, 3))
    st(p, 4)
    p(f"ds_write_b64 {R(X.vSW2)}, {R(SA + 8, 2)}")
    for r in range(4):
        p(f"v_mov_b32_dpp {R(SA + r)}, {R(SA + 4 + r)} row_ror:8 row_mask:0xf bank_mask:0xc")
    p(f"ds_write_b128 {R(X.vSW)}, {R(SA, 4)}")
    p("s_waitcnt lgkmcnt(0)")
    st(p, 5)
    p("s_barrier")
    st(p, 1)
    V = TA
    for w2 in range(4):
        p(f"ds_read_b64 {R(V + 2 * w2, 2)}, {R(X.vSR)} offset:{w2 * 8 * X.RS}")
    m, t = TA + 8, TA + 9
    p("s_waitcnt lgkmcnt(2)")
    p(f"v_pk_add_f32 {R(V, 2)}, {R(V, 2)}, {R(V + 2, 2)}")
    p("s_waitcnt lgkmcnt(0)")
    p(f"v_pk_add_f32 {R(V + 4, 2)}, {R(V + 4, 2)}, {R(V + 6, 2)}")
    p(f"v_pk_add_f32 {R(V, 2)}, {R(V, 2)}, {R(V + 4, 2)}")
    st(p, 11)
    p(f"v_max_f32 {R(m)}, {R(V)}, {R(V + 1)}")
    allreduce32(p, "v_max_f32", m, t)
    for r in range(2): p(f"v_sub_f32 {R(V + r)}, {R(V + r)}, {R(m)}")
    for r in range(2): p(f"v_exp_f32 {R(V + r)}, {R(V + r)}")
    p(f"v_add_f32 {R(m)}, {R(V)}, {R(V + 1)}")
    allreduce32(p, "v_add_f32", m, t)
    p(f"v_rcp_f32 {R(m)}, {R(m)}")
    for r in range(2): p(f"v_mul_f32 {R(V + r)}, {R(V + r)}, {R(m)}")
    p(f"v_cvt_pk_bf16_f32 {R(V + 4)}, {R(V)}, {R(V + 1)}")
    p(f"v_min_u32 {R(V + 4)}, -2, {R(V + 4)}")
    p(f"buffer_store_dword {R(V + 4)}, {R(X.vPO)}, {SRD}, {S(X.sPX)} offen")
    st(p, 2)
    p(f"s_add_u32 {S(X.sMEM)}, {S(X.sMEM)}, {MEM_STRIDE}")
    p(f"s_add_u32 {S(X.sPX)}, {S(X.sPX)}, {PX_STRIDE}")
    p(f"s_add_u32 {S(X.sSTEP)}, {S(X.sSTEP)}, 1")
    p(f"s_add_u32 {S(X.sMW)}, {S(X.sMW)}, {MEM_STRIDE}")
    p("s_waitcnt vmcnt(1)")
    x_keys_read(p)
    for r in range(28): p(f"v_mov_b32 {R(TA + r)}, 0")
    if OPT.get('xsleep'): p(f"s_sleep {OPT['xsleep']}")
    p(f"s_cmp_lt_u32 {S(X.sSTEP)}, {nsteps}")
    p(f"s_cbranch_scc1 {LOOP}")
    return ool or (lambda p: None)

class YR:
    MO = 0; UA = 28; VX = 76; UF = 108; PA = 116; OA = 136; IDX = 160
    RING = (60, 68, 144, 152)
    vG0 = 161; vG1 = 162; vL16 = 163; vWL = 164; vP1 = 165; vP2 = 166; vYW = 167; vYR = 168; vMO = 169
    vG1W = 170; t0 = 171; t1 = 172; t2 = 173; t3 = 174; MP = 176; vFL = 178; FL = 180; vR5 = 182; vR6 = 183; TCH = 184
    LDS_MEMS = 0; LDS_YP = 8192; LDS_W = 13312; LDS_END = 13312 + 131072
    LDSS = (3, 5)
    @staticmethod
    def W(t, sg):
        if sg in YR.LDSS: return None
        f = 5 * t + [0, 1, 2, None, 3, None, 4][sg]
        return 256 + 8 * f if f < 32 else 192 + 8 * (f - 32)
    @staticmethod
    def lds_slot(t, sg): return 2 * t + YR.LDSS.index(sg)
    sMEM = 16; sPX = 17; sVX = 18; sUF = 19; sSTEP = 20; sMW = 21; sCNT = 24; sWB = 25; sMN = 26; sUFP = 27

def y_setup(p, vlane):
    Y = YR
    n, g, a, b = Y.t0, Y.t1, Y.t2, Y.t3
    lane_fields(p, vlane, n, g)
    p(f"v_lshlrev_b32 {R(Y.vL16)}, 4, {R(vlane)}")
    p(f"s_lshl_b32 s30, {S(sW)}, 10")
    p(f"v_add_u32 {R(Y.vG0)}, s30, {R(Y.vL16)}")
    chunk_addrs(p, Y)
    sparse_index(p, vlane, Y.IDX, a, b)
    p(f"s_lshl_b32 s30, {S(sW)}, 15")
    p(f"s_add_u32 s30, s30, {Y.LDS_W}")
    p(f"v_add_u32 {R(Y.vWL)}, s30, {R(Y.vL16)}")
    p(f"s_lshl_b32 s30, {S(sW)}, 11")
    p(f"v_add_u32 {R(Y.vP1)}, s30, {R(Y.vL16)}")
    p(f"s_lshl_b32 s30, {S(sW)}, 9")
    p(f"s_add_u32 s30, s30, 8192")
    p(f"v_lshlrev_b32 {R(a)}, 3, {R(vlane)}")
    p(f"v_add_u32 {R(Y.vP2)}, s30, {R(a)}")
    p(f"v_and_b32 {R(a)}, 1, {R(g)}")
    p(f"v_mul_u32_u24 {R(a)}, {4 * 144}, {R(a)}")
    p(f"v_lshrrev_b32 {R(b)}, 1, {R(g)}")
    p(f"v_lshl_add_u32 {R(b)}, {R(b)}, 4, {R(n)}")
    p(f"v_lshl_add_u32 {R(a)}, {R(b)}, 2, {R(a)}")
    p(f"s_mul_i32 s30, {S(sW)}, {8 * 144}")
    p(f"s_add_u32 s30, s30, {Y.LDS_YP}")
    p(f"v_add_u32 {R(Y.vYW)}, s30, {R(a)}")
    p(f"s_and_b32 s31, {S(sW)}, 1")
    p(f"s_lshl_b32 s31, s31, 6")
    p(f"v_add_u32 {R(n)}, s31, {R(vlane)}")
    p(f"v_lshrrev_b32 {R(a)}, 2, {R(n)}")
    p(f"v_and_b32 {R(a)}, 7, {R(a)}")
    p(f"v_mul_u32_u24 {R(a)}, 144, {R(a)}")
    p(f"v_lshrrev_b32 {R(b)}, 5, {R(n)}")
    p(f"v_lshl_add_u32 {R(a)}, {R(b)}, 5, {R(a)}")
    p(f"v_and_b32 {R(b)}, 3, {R(n)}")
    p(f"v_lshl_add_u32 {R(a)}, {R(b)}, 3, {R(a)}")
    p(f"v_add_u32 {R(Y.vYR)}, {Y.LDS_YP}, {R(a)}")
    p(f"s_lshl_b32 s30, {S(sROLE)}, 9")
    p(f"v_lshlrev_b32 {R(a)}, 2, {R(n)}")
    p(f"s_cmp_lt_u32 {S(sW)}, 2")
    p(f"s_cselect_b32 s30, s30, 0x80000000")
    p(f"v_add_u32 {R(Y.vMO)}, s30, {R(a)}")
    p(f"s_mov_b32 {S(Y.sMEM)}, {OFF_MEM}")
    p(f"s_mov_b32 {S(Y.sMN)}, {OFF_MEM + MEM_STRIDE}")
    p(f"s_mov_b32 {S(Y.sPX)}, {OFF_PX}")
    p(f"s_mul_i32 s30, {S(sW)}, {4 * 28}")
    p(f"s_lshl_b32 s31, {S(sROLE)}, 1")
    p(f"s_add_u32 s30, s30, s31")
    p(f"s_lshl_b32 s30, s30, 10")
    p(f"s_add_u32 {S(Y.sVX)}, s30, {OFF_VX}")
    p(f"s_mov_b32 {S(Y.sSTEP)}, 0")

def y_load_weights(p):
    Y = YR
    p(f"s_lshl_b32 s30, {S(sW)}, 2")
    p(f"s_add_u32 s30, s30, 16")
    p(f"s_mul_i32 s30, s30, 28")
    p(f"s_lshl_b32 s31, {S(sROLE)}, 1")
    p(f"s_add_u32 s30, s30, s31")
    p(f"s_mul_i32 s30, s30, 14336")
    p(f"s_add_u32 {S(Y.sWB)}, s30, {OFF_F}")
    def tile_loads(sg, dst):
        chunk_of(p, XORD[sg], 11)
        p(f"s_add_u32 s29, s30, {S(Y.sWB)}")
        for t in range(8):
            p(f"s_add_u32 s30, s29, {((t >> 1) * 28 + (t & 1)) * 14336}")
            for hf in range(2):
                p(f"buffer_load_dwordx4 {R(dst(t) + 4 * hf, 4)}, {R(Y.vL16)}, {SRD}, s30 offen offset:{hf * 1024} sc1")
    for q, sg in enumerate(Y.LDSS): tile_loads(sg, lambda t: 64 * q + 8 * t)
    regsl = [sg for sg in range(7) if sg not in Y.LDSS]
    for q, sg in enumerate(regsl):
        tile_loads(sg, lambda t: Y.W(t, sg))
        if q == 1:
            p("s_waitcnt vmcnt(32)")
            for q2, s2 in enumerate(Y.LDSS):
                for t in range(8):
                    for h2 in range(2):
                        p(f"ds_write_b128 {R(Y.vWL)}, {R(64 * q2 + 8 * t + 4 * h2, 4)} offset:{Y.lds_slot(t, s2) * 2048 + h2 * 1024}")

def y_vx_loads():
    Y = YR
    out = []
    if OPT.get('no_vx'): return out
    for hh in range(4):
        if hh == 0: so = S(Y.sVX)
        else:
            out.append(f"s_add_u32 s30, {S(Y.sVX)}, {hh * 28672}"); so = "s30"
        for ct in range(2):
            r = Y.VX + ((hh >> 1) * 2 + ct) * 8 + (hh & 1) * 4
            out.append(f"buffer_load_dwordx4 {R(r, 4)}, {R(Y.vL16)}, {SRD}, {so} offen offset:{1024 * ct} sc1")
    return out

def role_Y(p, fail, stamp=None, nsteps=63, hooks=None):
    Y = YR
    hooks = hooks or {}
    st = stamp or (lambda p, k: None)
    MO, UA, VX = Y.MO, Y.UA, Y.VX
    order = [0, 2, 4, 6, 1, 3, 5, 7]
    lds_seq = [(t, sg) for t in order for sg in Y.LDSS]
    NR = len(Y.RING)
    def ringread(i):
        t, sg = lds_seq[i]; r = Y.RING[i % NR]; o = Y.lds_slot(t, sg) * 2048
        return [f"ds_read_b128 {R(r, 4)}, {R(Y.vWL)} offset:{o}", f"ds_read_b128 {R(r + 4, 4)}, {R(Y.vWL)} offset:{o + 1024}"]
    def prepare():
        for i in range(NR):
            for x in ringread(i): p(x)
        for r in range(32): p(f"v_mov_b32 {R(UA + r)}, 0")
        for r in range(8): p(f"v_mov_b32 {R(Y.OA + r)}, 0")
    prepare()
    LOOP = p.newlabel("yloop"); DONE = p.newlabel("ydone"); p.label(LOOP)
    def smf(t, a, w): return f"v_smfmac_f32_16x16x64_bf16 {R(UA + 4 * t, 4)}, {R(a, 4)}, {R(w, 8)}, {R(Y.IDX)}"
    wr = [f"ds_write_b128 {R(Y.vG0)}, {R(MO, 4)}", f"ds_write_b128 {R(Y.vG1W)}, {R(MO + 4, 4)}"]
    poll(p, [(MO, 4, Y.vG0, 0), (MO + 4, 4, Y.vG1, 0)], Y.sMEM, Y.t0, Y.sCNT, fail, wr, back=OPT.get('bm', 0))
    st(p, 3)
    slow = y_vx_loads() + hooks.get('early', [])
    def upost(ct, pr):
        a, b = UA + 4 * (4 * pr + ct), UA + 4 * (4 * pr + 2 + ct)
        return half_sum(a, b) + [f"v_cvt_pk_bf16_f32 {R(Y.UF + 4 * ct + pr)}, {R(a)}, {R(a + 1)}",
                                 f"v_cvt_pk_bf16_f32 {R(Y.UF + 4 * ct + 2 + pr)}, {R(a + 2)}, {R(a + 3)}"]
    rd = staged_reads(Y)
    seq = [(t, 0) for t in order] + [(t, 1) for t in order] + [(t, sg) for t in order for sg in range(2, 7)]
    li = 0; nxt = 1; ystep = OPT.get('ystep', 3)
    pend = []; lg = []
    def need(tag):
        if tag in lg:
            k = len(lg) - 1 - lg.index(tag)
            p(f"s_waitcnt lgkmcnt({k})"); del lg[:len(lg) - k]
    for k, (t, sg) in enumerate(seq):
        if sg in Y.LDSS:
            need(('r', li)); w = Y.RING[li % NR]
        else:
            w = Y.W(t, sg)
        if sg >= 2: need(('m', sg))
        p(smf(t, MO + 4 * sg, w))
        if k == 5:
            p("s_waitcnt lgkmcnt(0)"); p("s_barrier"); st(p, 4)
        if 5 <= k < 10:
            p(rd[k - 5]); lg.append(('m', k - 3))
        elif sg in Y.LDSS:
            if li + NR < len(lds_seq):
                for i in ringread(li + NR): p(i)
                lg += [None, ('r', li + NR)]
            li += 1
        elif slow and k >= nxt:
            while not slow[0].startswith("buffer"): p(slow.pop(0))
            p(slow.pop(0)); nxt = k + ystep
        elif pend:
            p(pend.pop(0))
        if k == 29: pend += upost(0, 0)
        if k == 39: pend += upost(0, 1)
        if k == 49: pend += upost(1, 0)
    assert not slow, slow
    for i in pend: p(i)
    st(p, 5)
    for i in upost(1, 1): p(i)
    st(p, 0)
    if any(x == ('Y', 8) for x in OPT.get('dst', [])):
        p("s_waitcnt vmcnt(0)"); st(p, 8)
    if OPT.get('ysleep_p'): p(f"s_sleep {OPT['ysleep_p']}")
    P = Y.PA
    def pl(P): return [(P, 4, Y.vP1, 0), (P + 4, 4, Y.vP1, 1024), (P + 8, 2, Y.vP2, 0)]
    def pz(P):
        for hp in range(2):
            for ct in range(2):
                p(f"v_smfmac_f32_16x16x64_bf16 {R(Y.OA + 4 * ct, 4)}, {R(P + 4 * hp, 4)}, {R(VX + (hp * 2 + ct) * 8, 8)}, {R(Y.IDX)}")
        for ct in range(2):
            p(f"v_smfmac_f32_16x16x32_bf16 {R(Y.OA + 4 * ct, 4)}, {R(P + 8, 2)}, {R(Y.UF + 4 * ct, 4)}, {R(Y.IDX)}")
    if OPT.get('yp', 1) == 1:
        poll(p, pl(P), Y.sPX, Y.t0, Y.sCNT, fail, back=OPT.get('bp', 0)); pz(P)
    else:
        okA, join = p.newlabel("ypA"), p.newlabel("ypJ")
        poll2(p, pl(P), pl(P + 10), Y.sPX, Y.t0, Y.sCNT, fail, okA); pz(P + 10)
        p(f"s_branch {join}"); p.label(okA); pz(P); p.label(join)
    st(p, 1)
    hs = half_sum(Y.OA, Y.OA + 4)
    for i in hs[:2] + hs[4:5]: p(i)
    p(f"ds_write2_b32 {R(Y.vYW)}, {R(Y.OA)}, {R(Y.OA + 1)} offset0:0 offset1:36")
    for i in hs[2:4] + hs[5:6]: p(i)
    p(f"ds_write2_b32 {R(Y.vYW)}, {R(Y.OA + 2)}, {R(Y.OA + 3)} offset0:72 offset1:108")
    p("s_waitcnt lgkmcnt(0)")
    st(p, 6)
    p("s_barrier")
    st(p, 7)
    skip = p.newlabel("yskip")
    p(f"s_cmp_lt_u32 {S(sW)}, 2")
    p(f"s_cbranch_scc0 {skip}")
    V = UA
    for w2 in range(4):
        p(f"ds_read_b64 {R(V + 2 * w2, 2)}, {R(Y.vYR)} offset:{w2 * 8 * 144}")
    p("s_waitcnt lgkmcnt(2)")
    p(f"v_pk_add_f32 {R(V, 2)}, {R(V, 2)}, {R(V + 2, 2)}")
    p("s_waitcnt lgkmcnt(0)")
    p(f"v_pk_add_f32 {R(V + 4, 2)}, {R(V + 4, 2)}, {R(V + 6, 2)}")
    p(f"v_pk_add_f32 {R(V, 2)}, {R(V, 2)}, {R(V + 4, 2)}")
    p(f"v_cvt_pk_bf16_f32 {R(Y.MP)}, {R(V)}, {R(V + 1)}")
    p(f"v_min_u32 {R(Y.MP)}, -2, {R(Y.MP)}")
    p(f"buffer_store_dword {R(Y.MP)}, {R(Y.vMO)}, {SRD}, {S(Y.sMN)} offen")
    st(p, 2)
    p.label(skip)
    p(f"s_add_u32 {S(Y.sSTEP)}, {S(Y.sSTEP)}, 1")
    p(f"s_cmp_eq_u32 {S(Y.sSTEP)}, {nsteps}")
    p(f"s_cbranch_scc1 {DONE}")
    p(f"s_add_u32 {S(Y.sMEM)}, {S(Y.sMEM)}, {MEM_STRIDE}")
    p(f"s_add_u32 {S(Y.sMN)}, {S(Y.sMN)}, {MEM_STRIDE}")
    p(f"s_add_u32 {S(Y.sPX)}, {S(Y.sPX)}, {PX_STRIDE}")
    p(f"s_add_u32 {S(Y.sVX)}, {S(Y.sVX)}, {16 * 28672}")
    if 'late' in hooks: hooks['late'](p)
    prepare()
    if OPT.get('ysleep_m'): p(f"s_sleep {OPT['ysleep_m']}")
    p(f"s_branch {LOOP}")
    p.label(DONE)
    p(f"s_mov_b32 s30, {OFF_MEMW + nsteps * MEM_STRIDE}")
    p(f"buffer_store_dword {R(Y.MP)}, {R(Y.vMO)}, {SRD}, s30 offen sc1")
    return lambda p: None
```

```python
from asmlib import *
from layout import *
SRD = "s[4:7]"
sW, sROLE, sXCC, sRANK, sN, sNN = 8, 9, 10, 11, 12, 13
WAIT_LIMIT = 2000000
K_X, K_MEM0, K_WQ, K_WK, K_WV, K_WO, K_G, K_U, K_D, K_OUT, K_DBG, K_WS = 0, 8, 16, 24, 32, 40, 64, 72, 80, 88, 96, 104

def lane_id(p, v):
    p(f"v_mbcnt_lo_u32_b32 {R(v)}, -1, 0")
    p(f"v_mbcnt_hi_u32_b32 {R(v)}, -1, {R(v)}")

def make_srd(p, s, koff, nbytes):
    p(f"s_load_dwordx2 {S(s, 2)}, s[0:1], {koff}")
    p("s_waitcnt lgkmcnt(0)")
    p(f"s_and_b32 {S(s + 1)}, {S(s + 1)}, 0xffff")
    p(f"s_mov_b32 {S(s + 2)}, {nbytes}")
    p(f"s_mov_b32 {S(s + 3)}, 0x20000")

def wait_flags(p, vaddr, soff, nlanes, vt, fail, sleep=2, scnt=28, imm=0):
    L, L0 = p.newlabel("wf"), p.newlabel("wf0")
    if nlanes < 64:
        m = (1 << nlanes) - 1
        p(f"s_mov_b32 exec_lo, {hex(m & 0xffffffff)}"); p(f"s_mov_b32 exec_hi, {hex(m >> 32)}")
    p(f"s_mov_b32 {S(scnt)}, 0")
    p(f"s_branch {L0}")
    p.label(L)
    p(f"s_sleep {sleep}")
    p.label(L0)
    p(f"buffer_load_dwordx2 {R(vt, 2)}, {R(vaddr)}, {SRD}, {soff} offen offset:{imm} sc1")
    p(f"s_add_u32 {S(scnt)}, {S(scnt)}, 1")
    p(f"s_cmp_gt_u32 {S(scnt)}, {WAIT_LIMIT}")
    p(f"s_cbranch_scc1 {fail}")
    p("s_waitcnt vmcnt(0)")
    p(f"v_xor_b32 {R(vt)}, {S(sN)}, {R(vt)}")
    p(f"v_xor_b32 {R(vt + 1)}, {S(sNN)}, {R(vt + 1)}")
    p(f"v_or_b32 {R(vt)}, {R(vt)}, {R(vt + 1)}")
    p(f"v_cmp_ne_u32 vcc, 0, {R(vt)}")
    p(f"s_cbranch_vccnz {L}")
    if nlanes < 64: p("s_mov_b64 exec, -1")

def set_flag(p, soff, vt, imm=0):
    p(f"v_mov_b32 {R(vt)}, {S(sN)}")
    p(f"v_mov_b32 {R(vt + 1)}, {S(sNN)}")
    p(f"v_mov_b32 {R(vt + 2)}, 0")
    p("s_mov_b64 exec, 1")
    p(f"buffer_store_dwordx2 {R(vt, 2)}, {R(vt + 2)}, {SRD}, {soff} offen offset:{imm} sc1")
    p("s_mov_b64 exec, -1")

def prologue(p, END, FAIL):
    p(f"""
    s_cmp_ge_u32 s2, 256
    s_cbranch_scc1 {END}
    s_load_dwordx4 s[16:19], s[0:1], {K_DBG}
    s_getreg_b32 s{sXCC}, hwreg(HW_REG_XCC_ID)
    s_and_b32 s{sXCC}, s{sXCC}, 7
    v_lshrrev_b32 v1, 6, v0
    s_lshl_b32 s14, s{sXCC}, 5
    v_mov_b32 v2, s14
    v_readfirstlane_b32 s{sW}, v1
    v_mov_b32 v3, 1
    s_waitcnt lgkmcnt(0)
    s_mov_b32 s4, s18
    s_and_b32 s5, s19, 0xffff
    s_mov_b32 s6, {WS_BYTES}
    s_mov_b32 s7, 0x20000
    s_cmp_eq_u32 s{sW}, 0
    s_cbranch_scc0 L_pro_norank
    s_mov_b64 exec, 1
    global_atomic_add v3, v2, v3, s[16:17] sc0 sc1
    s_cmp_eq_u32 s2, 0
    s_cbranch_scc0 L_pro_noepoch
    v_mov_b32 v4, {OFF_EPOCH}
    buffer_load_dword v5, v4, {SRD}, 0 offen sc1
    s_waitcnt vmcnt(0)
    v_add_u32 v5, 1, v5
    v_max_u32 v5, 1, v5
    v_mov_b32 v6, 4
    global_store_dword v6, v5, s[16:17] sc1
    buffer_store_dword v5, v4, {SRD}, 0 offen sc1
L_pro_noepoch:
    s_waitcnt vmcnt(0)
    v_mov_b32 v2, 0
    ds_write_b32 v2, v3
    s_waitcnt lgkmcnt(0)
    s_mov_b64 exec, -1
L_pro_norank:
    s_barrier
    v_mov_b32 v2, 0
    ds_read_b32 v3, v2
    s_waitcnt lgkmcnt(0)
    v_readfirstlane_b32 s{sRANK}, v3
    s_barrier
    s_cmp_ge_u32 s{sRANK}, 32
    s_cbranch_scc1 {FAIL}
    """)

def get_epoch(p, FAIL, vt):
    L = p.newlabel("ep")
    p(f"s_load_dwordx2 s[14:15], s[0:1], {K_DBG}")
    p(f"v_mov_b32 {R(vt)}, 4")
    p("s_mov_b32 s28, 0")
    p("s_waitcnt lgkmcnt(0)")
    p.label(L)
    p(f"global_load_dword {R(vt + 1)}, {R(vt)}, s[14:15] sc1")
    p("s_add_u32 s28, s28, 1")
    p(f"s_cmp_gt_u32 s28, {WAIT_LIMIT}")
    p(f"s_cbranch_scc1 {FAIL}")
    p("s_waitcnt vmcnt(0)")
    p(f"v_readfirstlane_b32 s{sN}, {R(vt + 1)}")
    p(f"s_cmp_eq_u32 s{sN}, 0")
    p(f"s_cbranch_scc1 {L}")
    p(f"s_not_b32 s{sNN}, s{sN}")

RT = {"on": False}
def lstamp(p, k):
    if not RT["on"]: return
    p("s_memrealtime s[68:69]"); p("s_waitcnt lgkmcnt(0)"); p(f"s_mov_b32 s{70 + k}, s68")
def lstamp_init(p):
    if not RT["on"]: return
    for k in range(16): p(f"s_mov_b32 s{70 + k}, 0")
def lstamp_dump(p):
    if not RT["on"]: return
    p("s_waitcnt vmcnt(0) lgkmcnt(0)")
    p(f"s_lshl_b32 s42, {S(sXCC)}, 5"); p(f"s_add_u32 s42, s42, {S(sRANK)}"); p("s_lshl_b32 s42, s42, 2")
    p(f"s_add_u32 s42, s42, {S(sW)}"); p("s_lshl_b32 s42, s42, 6"); p(f"s_add_u32 s42, s42, {OFF_DBG + 0x60000}")
    p("s_mov_b64 exec, 1")
    for k in range(16): p(f"v_mov_b32 v{k}, s{70 + k}")
    p("v_mov_b32 v16, 0")
    for k in range(4): p(f"buffer_store_dwordx4 v[{4 * k}:{4 * k + 3}], v16, {SRD}, s42 offen offset:{16 * k}")
```

```python
from common import *

OPT = {}
def fab(p, FAIL, DONE):
    nt_ = OPT.get("wmod", "nt")
    sM, sCG, sH, sSCALE, sHC, sOUT, sBUF, sSRC, sIT = 16, 17, 18, 19, 20, 21, 22, 23, 24
    SA, SB = 32, 36
    vSrc, vRd, vL16, vT = 8, 16, 20, 24
    OUT, ACC, AF, ST = 40, 64, 96, 128
    LS = 131072
    lane = 2
    isB, join = p.newlabel("fabB"), p.newlabel("fabJ")
    p(f"s_lshl_b32 s29, {S(sXCC)}, 5")
    p(f"s_add_u32 s29, s29, {S(sRANK)}")
    p(f"s_sub_u32 s29, s29, 32")
    p(f"s_mul_i32 {S(sM)}, s29, 9363")
    p(f"s_lshr_b32 {S(sM)}, {S(sM)}, 16")
    assert all((x * 9363) >> 16 == x // 7 for x in range(224))
    p(f"s_mul_i32 s31, {S(sM)}, 7")
    p(f"s_sub_u32 {S(sCG)}, s29, s31")
    p(f"s_and_b32 {S(sH)}, {S(sM)}, 15")
    p(f"s_cmp_ge_u32 {S(sM)}, 16")
    p(f"s_cselect_b32 s30, {K_WV}, {K_WQ}")
    p(f"s_load_dwordx4 s[40:43], s[0:1], s30")
    lane_id(p, lane)
    p(f"v_lshlrev_b32 {R(vL16)}, 4, {R(lane)}")
    p(f"v_lshrrev_b32 v3, 5, {R(lane)}")
    p(f"v_and_b32 v4, 31, {R(lane)}")
    p(f"v_xor_b32 v4, v4, v3")
    p(f"v_lshlrev_b32 v4, 4, v4")
    p(f"v_lshl_add_u32 v4, v3, 13, v4")
    for i in range(8): p(f"v_xor_b32 {R(vSrc + i)}, {32 * i}, v4")
    p(f"v_and_b32 v3, 15, {R(lane)}")
    p(f"v_lshrrev_b32 v4, 4, {R(lane)}")
    p(f"v_xor_b32 v4, v4, v3")
    p(f"v_lshlrev_b32 v4, 4, v4")
    p(f"v_lshl_add_u32 v4, v3, 9, v4")
    for k in range(4): p(f"v_xor_b32 {R(vRd + k)}, {64 * k}, v4")
    p(f"s_lshl_b32 {S(sBUF)}, {S(sW)}, 14")
    p(f"s_mov_b32 {S(sHC)}, {S(sW)}")
    p("s_waitcnt lgkmcnt(0)")
    p(f"s_mov_b32 {S(SA)}, s40"); p(f"s_and_b32 {S(SA + 1)}, s41, 0xffff")
    p(f"s_mov_b32 {S(SB)}, s42"); p(f"s_and_b32 {S(SB + 1)}, s43, 0xffff")
    for x in (SA, SB):
        p(f"s_mov_b32 {S(x + 2)}, {448 * 8192}"); p(f"s_mov_b32 {S(x + 3)}, 0x20000")
    def stream_dma():
        L = p.newlabel("sdma")
        p(f"s_lshl_b32 s30, {S(sHC)}, 18")
        p(f"s_lshl_b32 s31, {S(sH)}, 9")
        p(f"s_add_u32 {S(sSRC)}, s30, s31")
        p(f"s_mov_b32 m0, {S(sBUF)}")
        p("s_mov_b32 s28, 0")
        p.label(L)
        for i in range(8):
            p(f"s_add_u32 s30, {S(sSRC)}, {tokperm(0, 2 * i) * 8192}")
            p(f"buffer_load_dwordx4 {R(vSrc + i)}, {S(SA, 4)}, s30 offen {nt_} lds")
            p("s_add_u32 m0, m0, 1024")
        p(f"s_add_u32 {S(sSRC)}, {S(sSRC)}, {2 * 8192}")
        p("s_add_u32 s28, s28, 1")
        p("s_cmp_lt_u32 s28, 2")
        p(f"s_cbranch_scc1 {L}")
        p(f"s_xor_b32 {S(sBUF)}, {S(sBUF)}, 0x10000")
        p(f"s_add_u32 {S(sHC)}, {S(sHC)}, 4")
    p(f"s_cmp_ge_u32 {S(sM)}, 16")
    p(f"s_cbranch_scc1 {isB}")
    p(f"s_mov_b32 {S(sSCALE)}, {fbits(SM_SCALE)}")
    p(f"s_lshl_b32 s29, {S(sCG)}, 2")
    p(f"s_add_u32 s29, s29, {S(sW)}")
    p(f"s_mul_i32 s30, s29, 37")
    p(f"s_lshr_b32 s30, s30, 8")
    p(f"s_mul_i32 s31, s30, 7")
    p(f"s_sub_u32 s29, s29, s31")
    p(f"s_mul_i32 s30, s30, 112")
    p(f"s_lshr_b32 s31, s29, 1")
    p(f"s_lshl_b32 s31, s31, 5")
    p(f"s_add_u32 s30, s30, s31")
    p(f"s_and_b32 s31, s29, 1")
    p(f"s_lshl_b32 s31, s31, 2")
    p(f"s_add_u32 s30, s30, s31")
    p(f"s_lshl_b32 s30, s30, 13")
    p(f"s_lshl_b32 s31, {S(sH)}, 9")
    p(f"s_add_u32 {S(sSRC)}, s30, s31")
    p(f"s_lshl_b32 s28, {S(sW)}, 13")
    p(f"s_add_u32 m0, s28, {LS}")
    p(f"s_cmp_eq_u32 s29, 6")
    p(f"s_cselect_b32 s29, {2 * 8192}, {6 * 8192}") if False else None
    p(f"s_mov_b32 s31, {2 * 8192}")
    p(f"s_cselect_b32 s29, s31, {6 * 8192}")
    for i in range(8):
        p(f"buffer_load_dwordx4 {R(vSrc + i)}, {S(SB, 4)}, {S(sSRC)} offen {nt_} lds")
        if i < 7:
            p(f"s_add_u32 {S(sSRC)}, {S(sSRC)}, {'s29' if i & 1 else 's31'}")
            p("s_add_u32 m0, m0, 1024")
    for k in range(4): p(f"v_add_u32 {R(vT + k)}, {LS}, {R(vRd + k)}")
    p(f"s_branch {join}")
    p.label(isB)
    p(f"s_mov_b32 {S(SB + 2)}, {4096 * 896}")
    p(f"s_mov_b32 {S(sSCALE)}, {fbits(1.0)}")
    p(f"v_lshrrev_b32 v3, 3, {R(lane)}")
    p(f"v_mul_u32_u24 v3, 896, v3")
    p(f"v_bfe_u32 v4, {R(lane)}, 4, 1")
    p(f"v_lshlrev_b32 v4, 1, v4")
    p(f"v_and_b32 v5, 7, {R(lane)}")
    p(f"v_xor_b32 v4, v4, v5")
    p(f"v_lshl_add_u32 {R(vT)}, v4, 4, v3")
    p(f"v_xor_b32 v4, 4, v4")
    p(f"v_lshl_add_u32 {R(vT + 1)}, v4, 4, v3")
    p(f"s_mul_i32 s30, {S(sH)}, {256 * 896}")
    p(f"s_lshl_b32 s31, {S(sCG)}, 7")
    p(f"s_add_u32 s30, s30, s31")
    p(f"s_mul_i32 s31, {S(sW)}, {64 * 896}")
    p(f"s_add_u32 {S(sSRC)}, s30, s31")
    p(f"s_lshl_b32 s28, {S(sW)}, 13")
    p(f"s_add_u32 m0, s28, {LS}")
    for i in range(8):
        p(f"buffer_load_dwordx4 {R(vT + (i & 1))}, {S(SB, 4)}, {S(sSRC)} offen {nt_} lds")
        if i < 7:
            p(f"s_add_u32 {S(sSRC)}, {S(sSRC)}, {8 * 896}")
            p("s_add_u32 m0, m0, 1024")
    p(f"v_and_b32 v3, 15, {R(lane)}")
    p(f"v_lshrrev_b32 v4, 4, {R(lane)}")
    p(f"v_lshrrev_b32 v5, 2, v3")
    p(f"v_lshl_add_u32 v6, v4, 3, v5")
    p(f"v_lshlrev_b32 v6, 7, v6")
    p(f"v_and_b32 v7, 1, v3")
    p(f"v_lshl_add_u32 v6, v7, 3, v6")
    p(f"v_add_u32 v6, {LS}, v6")
    p(f"v_and_b32 v4, 1, v4")
    p(f"v_lshlrev_b32 v4, 2, v4")
    p(f"v_and_b32 v5, 2, v5")
    p(f"v_or_b32 v4, v4, v5")
    p(f"v_bfe_u32 v5, v3, 1, 1")
    p(f"v_xor_b32 v4, v4, v5")
    for nt in range(4):
        p(f"v_xor_b32 v5, {2 * nt}, v4")
        p(f"v_lshl_add_u32 {R(vT + 2 + nt)}, v5, 4, v6")
    p.label(join)
    L2 = p.newlabel("fab2")
    p.label(L2)
    stream_dma()
    p(f"s_cmp_lt_u32 {S(sHC)}, 8")
    p(f"s_cbranch_scc1 {L2}")
    p(f"s_lshl_b32 s30, {S(sCG)}, 2")
    p(f"s_add_u32 s30, s30, {S(sW)}")
    p("s_mul_i32 s30, s30, 7")
    p("s_lshr_b32 s30, s30, 1")
    p("s_min_u32 s30, s30, 92")
    p("s_lshl_b32 s30, s30, 14")
    p(f"s_lshl_b32 s31, {S(sH)}, 9")
    p("s_add_u32 s30, s30, s31")
    p(f"s_add_u32 s30, s30, {256 * 8192}")
    for i in range(4):
        p(f"buffer_load_dwordx4 {R(56, 4)}, {R(vSrc)}, {S(SA, 4)}, s30 offen")
        if i < 3: p(f"s_add_u32 s30, s30, {2 * 8192}")
    lstamp(p, 2)
    p("s_waitcnt vmcnt(36)")
    p("s_barrier")
    lstamp(p, 3)
    rdB, rdJ = p.newlabel("fabrB"), p.newlabel("fabrJ")
    p(f"s_cmp_ge_u32 {S(sM)}, 16")
    p(f"s_cbranch_scc1 {rdB}")
    for nt in range(4):
        for ks in range(8):
            p(f"ds_read_b128 {R(ST + 32 * nt + 4 * ks, 4)}, {R(vT + (ks & 3))} offset:{nt * 8192 + (ks >> 2) * 256}")
    p(f"s_branch {rdJ}")
    p.label(rdB)
    for nt in range(4):
        for ks in range(8):
            for hf in range(2):
                p(f"ds_read_b64_tr_b16 {R(ST + 32 * nt + 4 * ks + 2 * hf, 2)}, {R(vT + 2 + nt)} offset:{ks * 4096 + hf * 512}")
    p.label(rdJ)
    p(f"s_mul_i32 s30, {S(sM)}, 28")
    p(f"s_lshl_b32 s31, {S(sCG)}, 2")
    p(f"s_add_u32 s30, s30, s31")
    p(f"s_mul_i32 s30, s30, 14336")
    p(f"s_lshl_b32 s31, {S(sW)}, 10")
    p(f"s_add_u32 s30, s30, s31")
    p(f"s_add_u32 {S(sOUT)}, s30, {OFF_F}")
    for k in range(4): p(f"v_add_u32 {R(vRd + k)}, {S(sBUF)}, {R(vRd + k)}")
    p(f"s_mov_b32 {S(sIT)}, {S(sW)}")
    p("s_waitcnt vmcnt(20) lgkmcnt(0)")
    lstamp(p, 4)
    LOOP, nodma, last = p.newlabel("fabl"), p.newlabel("fabn"), p.newlabel("fablast")
    p.label(LOOP)
    def rd(ks):
        for tau in range(2):
            p(f"ds_read_b128 {R(AF + 8 * (ks % 3) + 4 * tau, 4)}, {R(vRd + (ks & 3))} offset:{tau * 8192 + (ks >> 2) * 256}")
    rd(0); rd(1)
    for ks in range(8):
        if ks + 2 < 8: rd(ks + 2)
        p(f"s_waitcnt lgkmcnt({min(4, 2 * (7 - ks))})")
        for nt in range(4):
            for tau in range(2):
                a = ACC + 8 * nt + 4 * tau
                c = "0" if ks == 0 else R(a, 4)
                p(f"v_mfma_f32_16x16x32_bf16 {R(a, 4)}, {R(AF + 8 * (ks % 3) + 4 * tau, 4)}, {R(ST + 32 * nt + 4 * ks, 4)}, {c}")
    for k in range(4): p(f"v_xor_b32 {R(vRd + k)}, 0x10000, {R(vRd + k)}")
    p(f"s_mov_b32 s30, {S(sOUT)}")
    for nt in range(4):
        a = ACC + 8 * nt
        for r in range(8): p(f"v_mul_f32 {R(a + r)}, {S(sSCALE)}, {R(a + r)}")
        for u in range(4): p(f"v_cvt_pk_bf16_f32 {R(OUT + 4 * nt + u)}, {R(a + 2 * u)}, {R(a + 2 * u + 1)}")
        if nt: p(f"s_add_u32 s30, s30, 14336")
        p(f"buffer_store_dwordx4 {R(OUT + 4 * nt, 4)}, {R(vL16)}, {SRD}, s30 offen sc1")
    p(f"s_add_u32 {S(sOUT)}, {S(sOUT)}, 4096")
    p(f"s_add_u32 {S(sIT)}, {S(sIT)}, 4")
    p(f"s_cmp_ge_u32 {S(sIT)}, 14")
    p(f"s_cbranch_scc1 {last}")
    p(f"s_cmp_ge_u32 {S(sHC)}, 14")
    p(f"s_cbranch_scc1 {nodma}")
    stream_dma()
    p("s_waitcnt vmcnt(20)")
    p(f"s_branch {LOOP}")
    p.label(nodma)
    p("s_waitcnt vmcnt(4)")
    p(f"s_branch {LOOP}")
    p.label(last)
    lstamp(p, 5)
    get_epoch(p, FAIL, 4)
    lstamp(p, 6)
    p(f"s_lshl_b32 s30, {S(sM)}, 3")
    p(f"s_add_u32 s30, s30, {S(sCG)}")
    p(f"s_lshl_b32 s30, s30, 2")
    p(f"s_add_u32 s30, s30, {S(sW)}")
    p(f"s_lshl_b32 s30, s30, 3")
    p(f"s_add_u32 s30, s30, {FL_FF}")
    p("s_waitcnt vmcnt(0)")
    lstamp(p, 7)
    set_flag(p, "s30", 4)
    p(f"s_branch {DONE}")

def layernorm(p, FAIL, DONE):
    sU = 16
    SX = 32
    RS = 912
    lane, vG, vW, vL16 = 2, 3, 4, 5
    X0, D0, T = 16, 48, 110
    p(f"s_mov_b32 {S(sU)}, {S(sRANK)}")
    make_srd(p, SX, K_X, 2048 * 896)
    lane_id(p, lane)
    p(f"v_lshlrev_b32 {R(vL16)}, 4, {R(lane)}")
    p(f"v_lshrrev_b32 v6, 3, {R(lane)}")
    p(f"v_and_b32 v7, 7, {R(lane)}")
    p(f"v_mul_u32_u24 {R(vG)}, 896, v6")
    p(f"v_lshl_add_u32 {R(vG)}, v7, 4, {R(vG)}")
    p(f"v_mul_u32_u24 {R(vW)}, {RS}, v6")
    p(f"v_lshl_add_u32 {R(vW)}, v7, 4, {R(vW)}")
    p(f"s_mul_i32 s30, {S(sW)}, {16 * RS}")
    p(f"v_add_u32 {R(vW)}, s30, {R(vW)}")
    p(f"s_lshl_b32 s30, {S(sU)}, 2")
    p(f"s_add_u32 s30, s30, {S(sW)}")
    p(f"s_mul_i32 s29, s30, {16 * 896}")
    p(f"s_add_u32 s28, s29, {8 * 896}")
    XR = (X0, X0 + 112)
    for ps in range(2):
        for i in range(7):
            p(f"buffer_load_dwordx4 {R(XR[ps] + 4 * i, 4)}, {R(vG)}, {S(SX, 4)}, {'s29' if ps == 0 else 's28'} offen offset:{128 * i} {OPT.get('wmod', 'nt')}")
    lstamp(p, 2)
    PO = 240
    for r in range(4): p(f"v_mov_b32 {R(PO + r)}, -1")
    p(f"s_lshl_b32 s30, {S(sU)}, 2")
    p(f"s_add_u32 s27, s30, {S(sW)}")
    p(f"s_lshl_b32 s30, s27, 12")
    p(f"s_add_u32 s30, s30, {OFF_MEMW}")
    for i in range(4): p(f"buffer_store_dwordx4 {R(PO, 4)}, {R(vL16)}, {SRD}, s30 offen offset:{1024 * i} sc1")
    p(f"s_lshl_b32 s30, s27, 12")
    p(f"s_add_u32 s31, s30, {OFF_MEM}")
    p(f"s_cmp_lt_u32 s27, 2")
    p(f"s_cselect_b32 s31, 0xf0000000, s31")
    for i in range(4): p(f"buffer_store_dwordx4 {R(PO, 4)}, {R(vL16)}, {SRD}, s31 offen offset:{1024 * i}")
    p(f"s_mul_i32 s30, s27, 5120")
    p(f"s_add_u32 s30, s30, {OFF_PX}")
    for i in range(4): p(f"buffer_store_dwordx4 {R(PO, 4)}, {R(vL16)}, {SRD}, s30 offen offset:{1024 * i}")
    p(f"s_add_u32 s30, s30, 4096")
    p(f"buffer_store_dwordx4 {R(PO, 4)}, {R(vL16)}, {SRD}, s30 offen")
    nom = p.newlabel("nomem0")
    p(f"s_cmp_lt_u32 s27, 7")
    p(f"s_cbranch_scc0 {nom}")
    make_srd(p, 36, K_MEM0, 8 * 896)
    p(f"v_mul_u32_u24 v6, 896, v7")
    p(f"v_lshrrev_b32 v7, 3, {R(lane)}")
    p(f"v_lshl_add_u32 v6, v7, 4, v6")
    p(f"s_lshl_b32 s30, s27, 7")
    p(f"buffer_load_dwordx4 {R(PO + 4, 4)}, v6, s[36:39], s30 offen")
    p(f"s_lshl_b32 s30, s27, 10")
    p(f"s_add_u32 s30, s30, {OFF_MEM}")
    p("s_waitcnt vmcnt(0)")
    for r in range(4): p(f"v_min_u32 {R(PO + 4 + r)}, -2, {R(PO + 4 + r)}")
    p(f"buffer_store_dwordx4 {R(PO + 4, 4)}, {R(vL16)}, {SRD}, s30 offen")
    p.label(nom)
    p(f"s_mov_b32 s20, {fbits(1.0 / 448)}")
    p(f"s_mov_b32 s21, {fbits(1e-5)}")
    p("s_mov_b32 s22, 0xffff0000")
    def red8(v):
        p(f"v_add_f32_dpp {R(v)}, {R(v)}, {R(v)} quad_perm:[1,0,3,2] row_mask:0xf bank_mask:0xf")
        p(f"v_add_f32_dpp {R(v)}, {R(v)}, {R(v)} quad_perm:[2,3,0,1] row_mask:0xf bank_mask:0xf")
        p(f"v_add_f32_dpp {R(v)}, {R(v)}, {R(v)} row_half_mirror row_mask:0xf bank_mask:0xf")
    def rbf(v):
        p(f"v_cvt_pk_bf16_f32 {R(v)}, {R(v)}, {R(v)}")
        p(f"v_and_b32 {R(v)}, s22, {R(v)}")
    for ps in range(2):
        X = XR[ps]
        p(f"s_waitcnt vmcnt({20 if ps == 0 else 13})")
        lstamp(p, 3 + ps)
        for k in range(28):
            p(f"v_lshlrev_b32 {R(D0 + 2 * k)}, 16, {R(X + k)}")
            p(f"v_and_b32 {R(D0 + 2 * k + 1)}, s22, {R(X + k)}")
        s0, s1, mean, mb, inv = T, T + 2, T + 4, T + 5, T + 6
        p(f"v_pk_add_f32 {R(s0, 2)}, {R(D0, 2)}, {R(D0 + 2, 2)}")
        p(f"v_pk_add_f32 {R(s1, 2)}, {R(D0 + 4, 2)}, {R(D0 + 6, 2)}")
        for k in range(4, 28):
            s = s0 if k % 2 == 0 else s1
            p(f"v_pk_add_f32 {R(s, 2)}, {R(s, 2)}, {R(D0 + 2 * k, 2)}")
        p(f"v_pk_add_f32 {R(s0, 2)}, {R(s0, 2)}, {R(s1, 2)}")
        p(f"v_add_f32 {R(mean)}, {R(s0)}, {R(s0 + 1)}")
        red8(mean)
        p(f"v_mul_f32 {R(mean)}, s20, {R(mean)}")
        q = T + 8
        for k in range(4): p(f"v_mov_b32 {R(s0 + k)}, 0")
        for k in range(56):
            p(f"v_sub_f32 {R(q + (k & 3))}, {R(D0 + k)}, {R(mean)}")
            p(f"v_fmac_f32 {R(s0 + (k & 3))}, {R(q + (k & 3))}, {R(q + (k & 3))}")
        p(f"v_pk_add_f32 {R(s0, 2)}, {R(s0, 2)}, {R(s1, 2)}")
        p(f"v_add_f32 {R(inv)}, {R(s0)}, {R(s0 + 1)}")
        red8(inv)
        p(f"v_mul_f32 {R(inv)}, s20, {R(inv)}")
        rbf(inv)
        p(f"v_add_f32 {R(inv)}, s21, {R(inv)}")
        rbf(inv)
        p(f"v_sqrt_f32 {R(inv)}, {R(inv)}")
        rbf(inv)
        p(f"v_rcp_f32 {R(inv)}, {R(inv)}")
        p(f"v_mov_b32 {R(mb)}, {R(mean)}")
        rbf(mb)
        for k in range(28):
            a = D0 + 2 * k
            p(f"v_sub_f32 {R(a)}, {R(a)}, {R(mb)}")
            p(f"v_sub_f32 {R(a + 1)}, {R(a + 1)}, {R(mb)}")
            p(f"v_cvt_pk_bf16_f32 {R(q)}, {R(a)}, {R(a + 1)}")
            p(f"v_lshlrev_b32 {R(a)}, 16, {R(q)}")
            p(f"v_and_b32 {R(a + 1)}, s22, {R(q)}")
            p(f"v_mul_f32 {R(a)}, {R(a)}, {R(inv)}")
            p(f"v_mul_f32 {R(a + 1)}, {R(a + 1)}, {R(inv)}")
            p(f"v_cvt_pk_bf16_f32 {R(X + k)}, {R(a)}, {R(a + 1)}")
        for i in range(7):
            p(f"ds_write_b128 {R(vW)}, {R(X + 4 * i, 4)} offset:{ps * 8 * RS + 128 * i}")
    p("s_waitcnt lgkmcnt(0)")
    p("s_barrier")
    lstamp(p, 5)
    n, g, a, b, c = 6, 7, 8, 9, 10
    p(f"v_and_b32 {R(n)}, 15, {R(lane)}")
    p(f"v_lshrrev_b32 {R(g)}, 4, {R(lane)}")
    p(f"s_lshr_b32 s20, {S(sW)}, 1")
    p(f"s_and_b32 s21, {S(sW)}, 1")
    p(f"s_mul_i32 s22, s20, {32 * RS}")
    p(f"s_lshl_b32 s23, {S(sU)}, 1")
    p(f"s_add_u32 s23, s23, s20")
    p(f"v_lshrrev_b32 {R(a)}, 3, {R(n)}")
    p(f"v_lshlrev_b32 {R(a)}, 4, {R(a)}")
    p(f"v_bfe_u32 {R(b)}, {R(n)}, 1, 1")
    p(f"v_lshl_add_u32 {R(a)}, {R(b)}, 3, {R(a)}")
    p(f"v_bfe_u32 {R(b)}, {R(n)}, 2, 1")
    p(f"v_lshl_add_u32 {R(a)}, {R(b)}, 2, {R(a)}")
    p(f"v_and_b32 {R(b)}, 1, {R(n)}")
    p(f"v_add_u32 {R(a)}, {R(a)}, {R(b)}")
    p(f"s_lshl_b32 s30, s21, 1")
    p(f"v_add_u32 {R(a)}, s30, {R(a)}")
    p(f"v_mul_u32_u24 {R(a)}, {RS}, {R(a)}")
    p(f"v_lshrrev_b32 {R(b)}, 1, {R(g)}")
    p(f"v_lshl_add_u32 {R(a)}, {R(b)}, 5, {R(a)}")
    p(f"v_and_b32 {R(b)}, 1, {R(g)}")
    p(f"v_lshl_add_u32 {R(a)}, {R(b)}, 3, {R(a)}")
    p(f"v_add_u32 {R(a)}, s22, {R(a)}")
    F0 = 16
    for ks in range(14):
        p(f"ds_read2_b32 {R(F0 + 4 * ks, 2)}, {R(a)} offset0:{16 * ks} offset1:{16 * ks + 4}")
        p(f"ds_read2_b32 {R(F0 + 4 * ks + 2, 2)}, {R(a)} offset0:{16 * ks + 1} offset1:{16 * ks + 5}")
    p(f"s_lshl_b32 s30, s21, 4")
    p(f"v_add_u32 {R(b)}, s30, {R(n)}")
    p(f"v_mul_u32_u24 {R(b)}, {RS}, {R(b)}")
    p(f"v_add_u32 {R(b)}, s22, {R(b)}")
    p(f"v_lshl_add_u32 {R(c)}, {R(g)}, 3, {R(b)}")
    p(f"v_lshl_add_u32 {R(b)}, {R(g)}, 4, {R(b)}")
    K0 = 80
    for w2 in range(4):
        for pp in range(3):
            p(f"ds_read_b128 {R(K0 + 14 * w2 + 4 * pp, 4)}, {R(b)} offset:{224 * w2 + 64 * pp}")
        p(f"ds_read_b64 {R(K0 + 14 * w2 + 12, 2)}, {R(c)} offset:{224 * w2 + 192}")
    p(f"s_lshl_b32 s30, s23, 1")
    p(f"s_add_u32 s30, s30, s21")
    p(f"s_mul_i32 s30, s30, 14336")
    p(f"s_add_u32 s30, s30, {OFF_XNF}")
    p("s_waitcnt lgkmcnt(0)")
    for ks in range(14):
        if ks and ks % 4 == 0: p("s_add_u32 s30, s30, 4096")
        p(f"buffer_store_dwordx4 {R(F0 + 4 * ks, 4)}, {R(vL16)}, {SRD}, s30 offen offset:{(ks % 4) * 1024} sc1")
    p(f"s_mul_i32 s30, s23, 28672")
    p(f"s_mul_i32 s31, s21, 3072")
    p(f"s_add_u32 s31, s31, s30")
    p(f"s_add_u32 s31, s31, {OFF_XK}")
    p(f"s_lshl_b32 s29, s21, 3")
    p(f"s_add_u32 s30, s30, s29")
    p(f"s_add_u32 s30, s30, {OFF_XK + 6144}")
    for w2 in range(4):
        for pp in range(3):
            p(f"buffer_store_dwordx4 {R(K0 + 14 * w2 + 4 * pp, 4)}, {R(vL16)}, {SRD}, s31 offen offset:{1024 * pp} sc1")
        p(f"buffer_store_dwordx2 {R(K0 + 14 * w2 + 12, 2)}, {R(vL16)}, {SRD}, s30 offen sc1")
        if w2 < 3:
            p("s_add_u32 s31, s31, 7168"); p("s_add_u32 s30, s30, 7168")
    lstamp(p, 6)
    get_epoch(p, FAIL, 6)
    p(f"s_lshl_b32 s30, {S(sU)}, 2")
    p(f"s_add_u32 s30, s30, {S(sW)}")
    p(f"s_lshl_b32 s30, s30, 3")
    p(f"s_add_u32 s30, s30, {FL_LN}")
    p("s_waitcnt vmcnt(0)")
    lstamp(p, 7)
    set_flag(p, "s30", 6)
    p(f"s_branch {DONE}")

def phase0(p, FAIL, DONE):
    LN = p.newlabel("ln")
    p(f"s_cmp_eq_u32 {S(sXCC)}, 0")
    p(f"s_cbranch_scc1 {LN}")
    fab(p, FAIL, DONE)
    p.label(LN)
    layernorm(p, FAIL, DONE)
```

```python
from common import *
import chain, workers
from chain import XR, YR

def poison_loop(p, vaddr, vval, start, stride, count, mods=""):
    L = p.newlabel("poi")
    p(f"s_mov_b32 s30, {start}")
    p.label(L)
    p(f"buffer_store_dword {R(vval)}, {R(vaddr)}, {SRD}, s30 offen {mods}")
    p(f"s_add_u32 s30, s30, {stride}")
    p(f"s_cmp_lt_u32 s30, {start + stride * count}")
    p(f"s_cbranch_scc1 {L}")

def init_flag(p, slot, vt):
    p("s_waitcnt vmcnt(0)")
    p(f"s_add_u32 s30, {S(sROLE)}, {slot}")
    p("s_lshl_b32 s30, s30, 2"); p(f"s_add_u32 s30, s30, {S(sW)}"); p("s_lshl_b32 s30, s30, 3")
    p(f"s_add_u32 s30, s30, {FL_IN}")
    set_flag(p, "s30", vt)

def delta_stamps(role):
    sel = [k for r, k in chain.OPT.get("dst", []) if r == role]
    if not sel: return None, (lambda p: None), (lambda p, b: None)
    def stamp(p, k):
        if k not in sel: return
        i = sel.index(k)
        p("s_memtime s[40:41]"); p("s_waitcnt lgkmcnt(0)")
        p("s_sub_u32 s42, s40, s52"); p(f"s_add_u32 s{54 + i}, s{54 + i}, s42"); p("s_mov_b32 s52, s40")
    def start(p):
        for i in range(54, 62): p(f"s_mov_b32 s{i}, 0")
        p("s_memtime s[52:53]"); p("s_waitcnt lgkmcnt(0)")
    def dump(p, base):
        p("s_waitcnt vmcnt(0)")
        for i in range(8): p(f"v_mov_b32 v{i}, s{54 + i}")
        p(f"s_add_u32 s30, {S(sROLE)}, {base}"); p("s_lshl_b32 s30, s30, 2"); p(f"s_add_u32 s30, s30, {S(sW)}"); p("s_lshl_b32 s30, s30, 5")
        p(f"s_add_u32 s30, s30, {OFF_DBG + 0x40000}")
        p("v_mov_b32 v8, 0")
        p(f"buffer_store_dwordx4 v[0:3], v8, {SRD}, s30 offen"); p(f"buffer_store_dwordx4 v[4:7], v8, {SRD}, s30 offen offset:16")
    return stamp, start, dump

def role_X(p, FAIL, END, st):
    X = XR
    lane, vL8, vt = 40, 41, 42
    lane_id(p, lane)
    chain.x_setup(p, lane)
    p(f"v_lshlrev_b32 {R(vL8)}, 3, {R(lane)}")
    lstamp(p, 8)
    workers.wait_all_ln(p, vL8, vt, FAIL)
    lstamp(p, 9)
    p(f"s_lshl_b32 s29, {S(sROLE)}, 8")
    p(f"s_add_u32 s29, s29, {FL_FF}")
    wait_flags(p, vL8, "s29", 28, vt, FAIL, sleep=1)
    st(p, 2)
    lstamp(p, 10)
    chain.x_load_weights(p)
    p("s_waitcnt vmcnt(0) lgkmcnt(0)")
    p("s_barrier")
    st(p, 3)
    lstamp(p, 12)
    stamp = None
    if chain.OPT.get("rt"):
        def stamp(p, k):
            if k != 2: return
            p("s_memrealtime s[40:41]"); p("s_memtime s[42:43]"); p("s_waitcnt lgkmcnt(0)")
            p("s_lshl_b64 exec, 1, s20"); p("v_mov_b32 v98, s40") if False else None
            p(f"s_add_u32 s44, {S(sROLE)}, 0"); p("s_lshl_b32 s44, s44, 2"); p(f"s_add_u32 s44, s44, {S(sW)}"); p("s_lshl_b32 s44, s44, 9")
            p("s_lshl_b32 s45, s20, 2"); p("s_add_u32 s44, s44, s45"); p(f"s_add_u32 s44, s44, {OFF_DBG + 0x20000}")
            p("s_mov_b64 exec, 1"); p("v_mov_b32 v36, s40"); p("v_mov_b32 v37, s42"); p("v_mov_b32 v38, 0")
            p(f"buffer_store_dword v36, v38, {SRD}, s44 offen"); p(f"buffer_store_dword v37, v38, {SRD}, s44 offen offset:256")
            p("s_mov_b64 exec, -1"); p("s_waitcnt vmcnt(0)")
    ds, dstart, ddump = delta_stamps('X')
    dstart(p)
    ool = chain.role_X(p, FAIL, stamp=ds or stamp)
    ddump(p, 0)
    st(p, 4)
    lstamp(p, 13)
    p(f"s_branch {END}")
    ool(p)

def role_Y(p, FAIL, END, st):
    Y = YR
    lane, vL8, vt = 175, 186, 188
    vFV, vFO, vF = Y.vFL, 179, 190
    sFV, sFU, sFU1, sFU2 = 44, 45, 46, 47
    lane_id(p, lane)
    chain.y_setup(p, lane)
    p(f"v_lshlrev_b32 {R(vL8)}, 3, {R(lane)}")
    lstamp(p, 8)
    workers.wait_all_ln(p, vL8, vt, FAIL)
    lstamp(p, 9)
    p(f"v_lshrrev_b32 v0, 2, {R(lane)}"); p("v_lshlrev_b32 v0, 8, v0")
    p(f"v_and_b32 v1, 3, {R(lane)}"); p("v_lshl_add_u32 v0, v1, 3, v0")
    p(f"s_lshl_b32 s29, {S(sW)}, 10")
    p(f"s_lshr_b32 s30, {S(sROLE)}, 1"); p("s_lshl_b32 s30, s30, 5")
    p("s_add_u32 s29, s29, s30")
    p(f"s_add_u32 s29, s29, {FL_FF + 16 * 256}")
    wait_flags(p, 0, "s29", 16, vt, FAIL, sleep=1)
    st(p, 2)
    lstamp(p, 10)
    chain.y_load_weights(p)
    lstamp(p, 11)
    p("s_waitcnt lgkmcnt(0)")
    p(f"v_and_b32 {R(vFV)}, 15, {R(lane)}"); p(f"v_lshlrev_b32 {R(vFV)}, 3, {R(vFV)}")
    p(f"s_lshl_b32 s30, {S(sW)}, 7")
    p(f"s_add_u32 {S(sFV)}, s30, {FL_VX}")
    wait_flags(p, vFV, S(sFV), 64, vt, FAIL, sleep=1)
    p("s_waitcnt lgkmcnt(0)")
    p("s_barrier")
    st(p, 3)
    lstamp(p, 12)
    early = [f"buffer_load_dwordx2 {R(Y.FL, 2)}, {R(vFV)}, {SRD}, {S(sFV)} offen offset:512 sc1"]
    def late(p):
        ok = p.newlabel("yvxok")
        p(f"s_add_u32 {S(sFV)}, {S(sFV)}, 512")
        p(f"v_xor_b32 {R(Y.FL)}, {S(sN)}, {R(Y.FL)}")
        p(f"v_xor_b32 {R(Y.FL + 1)}, {S(sNN)}, {R(Y.FL + 1)}")
        p(f"v_or_b32 {R(Y.FL)}, {R(Y.FL)}, {R(Y.FL + 1)}")
        p(f"v_cmp_ne_u32 vcc, 0, {R(Y.FL)}")
        p(f"s_cbranch_vccz {ok}")
        p(f"s_cmp_ge_u32 {S(Y.sSTEP)}, 63")
        p(f"s_cbranch_scc1 {ok}")
        wait_flags(p, vFV, S(sFV), 64, Y.FL, FAIL, sleep=1)
        p.label(ok)
    ds, dstart, ddump = delta_stamps('Y')
    dstart(p)
    chain.role_Y(p, FAIL, stamp=ds, hooks=dict(early=early, late=late))
    ddump(p, 16)
    st(p, 4)
    lstamp(p, 13)
    p(f"s_branch {END}")

RANGES = (("VW", 0, 32), ("GU", 32, 74), ("TW", 74, 106), ("UW", 106, 138), ("GD", 138, 170), ("F", 170, 212))
def dispatch(p, roles, END, FAIL, opt):
    chain.OPT.clear(); chain.OPT.update(dict(xp=2, yp=2, pgap=12, ystep=2)); chain.OPT.update(opt)
    on = opt.get("rt")
    def st(p, k):
        if not on: return
        p("s_memrealtime s[40:41]")
        p(f"s_lshl_b32 s42, {S(sXCC)}, 5"); p(f"s_add_u32 s42, s42, {S(sRANK)}"); p("s_lshl_b32 s42, s42, 2")
        p(f"s_add_u32 s42, s42, {S(sW)}"); p("s_lshl_b32 s42, s42, 6"); p(f"s_add_u32 s42, s42, {OFF_DBG + 4 * k}")
        p("s_waitcnt vmcnt(0) lgkmcnt(0)")
        p("s_mov_b64 s[14:15], exec"); p("s_mov_b64 exec, 1")
        p("v_mov_b32 v114, s40"); p("v_mov_b32 v115, 0")
        p(f"buffer_store_dword v114, v115, {SRD}, s42 offen")
        p("s_waitcnt vmcnt(0)")
        p("s_mov_b64 exec, s[14:15]")
    FIN = p.newlabel("fin")
    p("s_waitcnt vmcnt(0) lgkmcnt(0)")
    p("s_barrier")
    st(p, 1)
    WK = p.newlabel("wk"); LX, LY = p.newlabel("rx"), p.newlabel("ry")
    p(f"s_cmp_eq_u32 {S(sXCC)}, 0")
    p(f"s_cbranch_scc0 {WK}")
    p(f"s_cmp_lt_u32 {S(sRANK)}, 16")
    p(f"s_cbranch_scc1 {LX}")
    p(f"s_cmp_lt_u32 {S(sRANK)}, 30")
    p(f"s_cbranch_scc1 {LY}")
    p(f"s_branch {END}")
    p.label(WK)
    p(f"s_mul_i32 {S(sROLE)}, {S(sRANK)}, 7")
    p(f"s_add_u32 {S(sROLE)}, {S(sROLE)}, {S(sXCC)}")
    p(f"s_sub_u32 {S(sROLE)}, {S(sROLE)}, 1")
    labs = {}
    for name, lo, hi in RANGES:
        labs[name] = p.newlabel(name)
        p(f"s_cmp_lt_u32 {S(sROLE)}, {hi}")
        p(f"s_cbranch_scc1 {labs[name]}")
    p(f"s_branch {END}")
    for name, lo, hi in RANGES:
        p.label(labs[name])
        if name not in roles:
            p(f"s_branch {END}"); continue
        if lo: p(f"s_sub_u32 {S(sROLE)}, {S(sROLE)}, {lo}")
        getattr(workers, "role_" + name)(p, FAIL, FIN)
    p.label(LX)
    if "X" in roles:
        p(f"s_mov_b32 {S(sROLE)}, {S(sRANK)}")
        role_X(p, FAIL, FIN, st)
    else: p(f"s_branch {END}")
    p.label(LY)
    if "Y" in roles:
        p(f"s_sub_u32 {S(sROLE)}, {S(sRANK)}, 16")
        role_Y(p, FAIL, FIN, st)
    else: p(f"s_branch {END}")
    p.label(FIN)
    lstamp(p, 15)
    lstamp_dump(p)
    if on:
        p("s_waitcnt vmcnt(0) lgkmcnt(0)")
        st(p, 5)
```

```python
from common import *
import chain

def Wmap(t, jc):
    f = 7 * t + jc
    return 256 + 8 * f if f < 32 else 120 + 8 * (f - 32)
def Wks(t, ks): return Wmap(t, ks >> 1) + 4 * (ks & 1)

def wait_all_ln(p, vL8, vt, FAIL):
    wait_flags(p, vL8, f"s29", 64, vt, FAIL) if False else None
    for k in range(2):
        p(f"s_mov_b32 s29, {FL_LN + 512 * k}")
        wait_flags(p, vL8, "s29", 64, vt, FAIL)

def load_matrix(p, smat, vL16, vL8, vt, FAIL):
    p(f"s_lshl_b32 s29, {S(smat)}, 8")
    p(f"s_add_u32 s29, s29, {FL_FF}")
    wait_flags(p, vL8, "s29", 28, vt, FAIL)
    p(f"s_mul_i32 s31, {S(smat)}, {28 * 14336}")
    p(f"s_mul_i32 s30, {S(sW)}, {7 * 14336}")
    p(f"s_add_u32 s31, s31, s30")
    p(f"s_add_u32 s29, s31, {OFF_F}")
    lstamp(p, 10)
    chain.load_weights(p, [Wmap(t, jc) for t in range(7) for jc in range(7)], 29, vL16)

def xnf_dma(vL16, sSRC, sDST):
    out = []
    for f in range(7):
        g = []
        if f == 0: g += [f"s_mov_b32 m0, {S(sDST)}"]
        if f == 4: g += [f"s_add_u32 m0, {S(sDST)}, 4096", f"s_add_u32 s30, {S(sSRC)}, 4096"]
        g.append(f"buffer_load_dwordx4 {R(vL16)}, {SRD}, {S(sSRC) if f < 4 else 's30'} offen offset:{(f % 4) * 1024} sc1 lds")
        out.append(g)
    return out

def seg_stream(p, nt, mfma, vRd, RING, fills):
    def rd(ks):
        for tau in range(2):
            p(f"ds_read_b128 {R(RING + 8 * (ks % 3) + 4 * tau, 4)}, {R(vRd)} offset:{(tau * 14 + ks) * 1024}")
    rd(0); rd(1)
    for ks in range(14):
        if ks + 2 < 14: rd(ks + 2)
        p(f"s_waitcnt lgkmcnt({min(4, 2 * (13 - ks))})")
        ms = mfma(ks, RING + 8 * (ks % 3))
        p(ms[0])
        for i in fills.get(ks, []): p(i)
        for m in ms[1:]: p(m)

def stream_setup(p, sSRC, sDST, sS, vL16, vRd, first_seg_sgpr):
    p(f"s_mul_i32 s30, {S(sS)}, 28672")
    p(f"s_mul_i32 {S(sDST)}, {S(sW)}, 7168")
    p(f"s_add_u32 s30, s30, {S(sDST)}")
    p(f"s_add_u32 {S(sSRC)}, s30, {OFF_XNF}")
    p(f"v_mov_b32 {R(vRd)}, {R(vL16)}")

def next_seg(p, sS, sSRC, sDST, step):
    p(f"s_add_u32 s30, {S(sS)}, {step}")
    p(f"s_add_u32 s31, {S(sSRC)}, {28672 * step}")
    p(f"s_cmp_lt_u32 s30, 64")
    p(f"s_cselect_b32 {S(sSRC)}, s31, 0xf0000000")
    p(f"s_add_u32 s31, {S(sDST)}, 28672")
    p(f"s_sub_u32 s30, {S(sDST)}, 28672")
    p(f"s_cmp_ge_u32 {S(sDST)}, 28672")
    p(f"s_cselect_b32 {S(sDST)}, s30, s31")

def flag_ins(vF, vFO, soff):
    return [f"buffer_store_dwordx2 {R(vF, 2)}, {R(vFO)}, {SRD}, {soff} offen sc1"]
def flag_setup(p, vF, vFO, lane):
    p(f"v_mov_b32 {R(vF)}, {S(sN)}")
    p(f"v_mov_b32 {R(vF + 1)}, {S(sNN)}")
    p(f"v_cmp_eq_u32 vcc, 0, {R(lane)}")
    p(f"v_mov_b32 {R(vFO)}, 0x80000000")
    p(f"v_cndmask_b32 {R(vFO)}, {R(vFO)}, 0, vcc")

def role_VW(p, FAIL, END, NP=2):
    sH, sS, sSRC, sDST, sOUT, sFL, sFLP = 16, 17, 18, 19, 20, 21, 22
    ACC, RING, vL16, vRd, vL8, lane, vF, vFO, vt = 0, 56, 80, 81, 82, 83, 84, 86, 88
    p(f"s_lshr_b32 {S(sH)}, {S(sROLE)}, 1")
    p(f"s_and_b32 {S(sS)}, {S(sROLE)}, 1")
    lane_id(p, lane)
    p(f"v_lshlrev_b32 {R(vL16)}, 4, {R(lane)}")
    p(f"v_lshlrev_b32 {R(vL8)}, 3, {R(lane)}")
    flag_setup(p, vF, vFO, lane)
    p(f"s_add_u32 s23, {S(sH)}, 16")
    load_matrix(p, 23, vL16, vL8, vt, FAIL)
    wait_all_ln(p, vL8, vt, FAIL)
    stream_setup(p, sSRC, sDST, sS, vL16, vRd, sS)
    for g in xnf_dma(vL16, sSRC, sDST):
        for i in g: p(i)
    p(f"s_lshl_b32 s30, {S(sS)}, 4")
    p(f"s_add_u32 s30, s30, {S(sH)}")
    p(f"s_lshl_b32 s31, s30, 2")
    p(f"s_add_u32 s31, s31, {S(sW)}")
    p(f"s_lshl_b32 s31, s31, 3")
    p(f"s_add_u32 {S(sFL)}, s31, {FL_VX}")
    p(f"s_mul_i32 s30, s30, 28672")
    p(f"s_mul_i32 s31, {S(sW)}, 7168")
    p(f"s_add_u32 s30, s30, s31")
    p(f"s_add_u32 {S(sOUT)}, s30, {OFF_VX}")
    p(f"s_mov_b32 {S(sFLP)}, 0xf0000000")
    p("s_waitcnt vmcnt(0)")
    lstamp(p, 12)
    LOOP = p.newlabel("vw"); p.label(LOOP)
    p("s_waitcnt vmcnt(8)")
    p("s_barrier")
    next_seg(p, sS, sSRC, sDST, NP)
    fills = {k: g for k, g in enumerate(xnf_dma(vL16, sSRC, sDST))}
    fills[10] = ["s_waitcnt vmcnt(7)"] + flag_ins(vF, vFO, S(sFLP))
    def mf(ks, r):
        return [f"v_mfma_f32_16x16x32_bf16 {R(ACC + 8 * t + 4 * tau, 4)}, {R(r + 4 * tau, 4)}, {R(Wks(t, ks), 4)}, "
                f"{'0' if ks == 0 else R(ACC + 8 * t + 4 * tau, 4)}" for t in range(7) for tau in range(2)]
    seg_stream(p, 7, mf, vRd, RING, fills)
    p(f"v_xor_b32 {R(vRd)}, {R(vRd)}, {R(vRd)}") if False else None
    p(f"s_cmp_ge_u32 {S(sDST)}, 28672")
    p(f"s_cselect_b32 s31, 28672, 0")
    p(f"v_add_u32 {R(vRd)}, s31, {R(vL16)}")
    p(f"s_add_u32 s30, {S(sOUT)}, 4096")
    for t in range(7):
        a = ACC + 8 * t
        for u in range(4): p(f"v_cvt_pk_bf16_f32 {R(a + u)}, {R(a + 2 * u)}, {R(a + 2 * u + 1)}")
        p(f"buffer_store_dwordx4 {R(a, 4)}, {R(vL16)}, {SRD}, {S(sOUT) if t < 4 else 's30'} offen offset:{(t % 4) * 1024} sc1")
    p(f"s_mov_b32 {S(sFLP)}, {S(sFL)}")
    p(f"s_add_u32 {S(sFL)}, {S(sFL)}, {NP * 512}")
    p(f"s_add_u32 {S(sOUT)}, {S(sOUT)}, {NP * 16 * 28672}")
    p(f"s_add_u32 {S(sS)}, {S(sS)}, {NP}")
    p(f"s_cmp_lt_u32 {S(sS)}, 64")
    p(f"s_cbranch_scc1 {LOOP}")
    p("s_waitcnt vmcnt(0)")
    for i in flag_ins(vF, vFO, S(sFLP)): p(i)
    p(f"s_branch {END}")

def role_TW(p, FAIL, END, NP=2):
    sH, sS, sSRC, sDST, sPT, sFL, sKS, sKD, sMW = 16, 17, 18, 19, 20, 21, 22, 23, 24
    sMASK = 44
    ACC, RING, KY, MK = 0, 56, 56, 72
    vL16, vKL, vMK, vMKL, vSW, vSR, vSRm, vPO, vRd, vL8, lane, vF, vFO, vt = 86, 87, 88, 89, 90, 91, 92, 93, 94, 95, 96, 98, 100, 102
    LK, LR = 57344, 86016
    p(f"s_lshr_b32 {S(sH)}, {S(sROLE)}, 1")
    p(f"s_and_b32 {S(sS)}, {S(sROLE)}, 1")
    lane_id(p, lane)
    p(f"v_lshlrev_b32 {R(vL16)}, 4, {R(lane)}")
    p(f"v_lshlrev_b32 {R(vL8)}, 3, {R(lane)}")
    flag_setup(p, vF, vFO, lane)
    n, g, a, b, c = 104, 105, 106, 107, 108
    chain.lane_fields(p, lane, n, g)
    p(f"s_mul_i32 s30, {S(sW)}, 7168")
    p(f"s_add_u32 {S(sKD)}, s30, {LK}")
    p(f"v_add_u32 {R(vKL)}, {S(sKD)}, {R(vL16)}")
    p(f"s_mul_i32 s31, {S(sS)}, 28672")
    p(f"s_add_u32 s30, s30, s31")
    p(f"s_add_u32 {S(sKS)}, s30, {OFF_XK}")
    p(f"v_and_b32 {R(a)}, 7, {R(n)}")
    p(f"v_lshlrev_b32 {R(a)}, 4, {R(a)}")
    p(f"s_mul_i32 s30, {S(sW)}, {14 * 128}")
    p(f"v_add_u32 {R(a)}, s30, {R(a)}")
    p(f"v_lshl_add_u32 {R(vMK)}, {R(g)}, 7, {R(a)}")
    p(f"v_lshrrev_b32 {R(b)}, 1, {R(g)}")
    p(f"v_lshl_add_u32 {R(a)}, {R(b)}, 7, {R(a)}")
    p(f"v_and_b32 {R(c)}, 1, {R(g)}")
    p(f"v_lshl_add_u32 {R(a)}, {R(c)}, 3, {R(a)}")
    p(f"v_add_u32 {R(vMKL)}, {12 * 128}, {R(a)}")
    p(f"s_mul_i32 s30, {S(sW)}, 6144")
    p(f"s_add_u32 s30, s30, {LR}")
    p(f"v_add_u32 {R(vSW)}, s30, {R(vL16)}")
    p(f"s_and_b32 s31, {S(sW)}, 1")
    p(f"s_mul_i32 s30, s31, 3072")
    p(f"s_add_u32 s30, s30, {LR}")
    p(f"v_lshl_add_u32 {R(a)}, {R(c)}, 4, {R(n)}")
    p(f"v_lshlrev_b32 {R(a)}, 4, {R(a)}")
    p(f"v_add_u32 {R(a)}, s30, {R(a)}")
    p(f"v_lshl_add_u32 {R(vSR)}, {R(b)}, 10, {R(a)}")
    p(f"v_lshl_add_u32 {R(vSRm)}, {R(b)}, 3, {R(a)}")
    p(f"v_add_u32 {R(vSRm)}, 2048, {R(vSRm)}")
    p(f"v_lshl_add_u32 {R(a)}, {R(c)}, 4, {R(n)}")
    p(f"v_lshlrev_b32 {R(a)}, 4, {R(a)}")
    p(f"v_lshl_add_u32 {R(a)}, {R(b)}, 2, {R(a)}")
    p(f"s_lshr_b32 s30, {S(sH)}, 2")
    p(f"s_lshl_b32 s30, s30, 11")
    p(f"s_and_b32 s29, {S(sH)}, 1")
    p(f"s_lshl_b32 s29, s29, 9")
    p(f"s_add_u32 s30, s30, s29")
    p(f"s_lshr_b32 s29, {S(sH)}, 1")
    p(f"s_and_b32 s29, s29, 1")
    p(f"s_lshl_b32 s29, s29, 3")
    p(f"s_add_u32 s30, s30, s29")
    p(f"s_add_u32 s30, s30, 32768")
    p(f"s_lshl_b32 s29, {S(sH)}, 11")
    p(f"s_sub_u32 s30, s30, s29")
    p(f"v_add_u32 {R(vPO)}, s30, {R(a)}")
    p(f"s_mul_i32 s30, {S(sS)}, {PT_STRIDE}")
    p(f"s_add_u32 s30, s30, s29")
    p(f"s_lshl_b32 s29, s31, 10")
    p(f"s_add_u32 s30, s30, s29")
    p(f"s_add_u32 {S(sPT)}, s30, {OFF_PT}")
    p(f"v_lshlrev_b32 {R(b)}, 4, {R(b)}")
    p(f"v_lshl_add_u32 {R(b)}, {R(c)}, 2, {R(b)}")
    p(f"v_lshrrev_b32 {R(a)}, 3, {R(n)}")
    p(f"v_lshlrev_b32 {R(a)}, 4, {R(a)}")
    p(f"v_bfe_u32 {R(c)}, {R(n)}, 1, 1")
    p(f"v_lshl_add_u32 {R(a)}, {R(c)}, 3, {R(a)}")
    p(f"v_bfe_u32 {R(c)}, {R(n)}, 2, 1")
    p(f"v_lshl_add_u32 {R(a)}, {R(c)}, 2, {R(a)}")
    p(f"v_and_b32 {R(c)}, 1, {R(n)}")
    p(f"v_add_u32 {R(a)}, {R(a)}, {R(c)}")
    p(f"s_lshl_b32 s30, s31, 1")
    p(f"v_add_u32 {R(a)}, s30, {R(a)}")
    p(f"v_sub_u32 {R(a)}, {R(a)}, {R(b)}")
    for k in range(8):
        p(f"v_cmp_le_i32 {S(sMASK + 2 * k, 2)}, {(k & 3) + 8 * (k >> 2)}, {R(a)}")
    p(f"s_lshl_b32 s30, {S(sS)}, 4")
    p(f"s_add_u32 s30, s30, {S(sH)}")
    p(f"s_lshl_b32 s30, s30, 1")
    p(f"s_add_u32 s30, s30, s31")
    p(f"s_lshl_b32 s30, s30, 3")
    p(f"s_add_u32 {S(sFL)}, s30, {FL_PT}")
    p(f"s_mul_i32 s30, {S(sS)}, {MEM_STRIDE}")
    p(f"s_add_u32 {S(sMW)}, s30, {OFF_MEMW}")
    load_matrix(p, sH, vL16, vL8, vt, FAIL)
    wait_all_ln(p, vL8, vt, FAIL)
    stream_setup(p, sSRC, sDST, sS, vL16, vRd, sS)
    for gr in xnf_dma(vL16, sSRC, sDST):
        for i in gr: p(i)
    LOOP = p.newlabel("tw"); p.label(LOOP)
    p("s_waitcnt vmcnt(0)")
    p("s_barrier")
    next_seg(p, sS, sSRC, sDST, NP)
    fills = {k: gr for k, gr in enumerate(xnf_dma(vL16, sKS, sKD) + xnf_dma(vL16, sSRC, sDST))}
    def T(t, tau): return ACC + 28 * tau + 4 * t
    def mf(ks, r):
        return [f"v_mfma_f32_16x16x32_bf16 {R(T(t, tau), 4)}, {R(Wks(t, ks), 4)}, {R(r + 4 * tau, 4)}, "
                f"{'0' if ks == 0 else R(T(t, tau), 4)}" for t in range(7) for tau in range(2)]
    seg_stream(p, 7, mf, vRd, RING, fills)
    p(f"s_cmp_ge_u32 {S(sDST)}, 28672")
    p(f"s_cselect_b32 s31, 28672, 0")
    p(f"v_add_u32 {R(vRd)}, s31, {R(vL16)}")
    def cvt(d, s): p(f"v_cvt_pk_bf16_f32 {R(d)}, {R(s)}, {R(s + 1)}")
    for pp in range(4):
        for tau in range(2):
            x = T(2 * pp, tau)
            cvt(x, x); cvt(x + 1, x + 2)
            if pp < 3: cvt(x + 2, x + 4); cvt(x + 3, x + 6)
    chain.poll(p, [(MK, 4, vMK, 0), (MK + 4, 4, vMK, 512), (MK + 8, 4, vMK, 1024), (MK + 12, 2, vMKL, 0)], sMW, vt, 28, FAIL, back=2)
    def krd(pp):
        r = KY + 8 * (pp & 1)
        if pp < 3:
            for k in range(2): p(f"ds_read_b128 {R(r + 4 * k, 4)}, {R(vKL)} offset:{(3 * k + pp) * 1024}")
        else:
            p(f"ds_read_b128 {R(r, 4)}, {R(vKL)} offset:6144")
    def SA(kap, tau): return T(2 * kap + 1, tau)
    krd(0); krd(1)
    for pp in range(4):
        p(f"s_waitcnt lgkmcnt({(2, 2, 1, 0)[pp]})")
        r = KY + 8 * (pp & 1)
        for kap in range(3):
            for tau in range(2):
                c_ = "0" if pp == 0 else R(SA(kap, tau), 4)
                if pp < 3:
                    key = r + 4 * kap if kap < 2 else MK + 4 * pp
                    p(f"v_mfma_f32_16x16x32_bf16 {R(SA(kap, tau), 4)}, {R(key, 4)}, {R(T(2 * pp, tau), 4)}, {c_}")
                else:
                    key = r + 2 * kap if kap < 2 else MK + 12
                    p(f"v_mfma_f32_16x16x16_bf16 {R(SA(kap, tau), 4)}, {R(key, 2)}, {R(T(6, tau), 2)}, {c_}")
        if pp + 2 < 4: krd(pp + 2)
    for tau in range(2):
        for kap in range(3):
            p(f"ds_write_b128 {R(vSW)}, {R(SA(kap, tau), 4)} offset:{(3 * tau + kap) * 1024}")
    p("s_waitcnt lgkmcnt(0)")
    p("s_barrier")
    skip = p.newlabel("twskip")
    p(f"s_cmp_lt_u32 {S(sW)}, 2")
    p(f"s_cbranch_scc0 {skip}")
    V = 0
    for w2 in range(4):
        p(f"ds_read_b128 {R(V + 12 * w2, 4)}, {R(vSR)} offset:{w2 * 6144}")
        p(f"ds_read_b128 {R(V + 12 * w2 + 4, 4)}, {R(vSR)} offset:{w2 * 6144 + 512}")
        p(f"ds_read_b64 {R(V + 12 * w2 + 8, 2)}, {R(vSRm)} offset:{w2 * 6144}")
    p("s_waitcnt lgkmcnt(0)")
    for (x, y) in ((0, 12), (24, 36), (0, 24)):
        for k in range(0, 10, 2): p(f"v_pk_add_f32 {R(V + x + k, 2)}, {R(V + x + k, 2)}, {R(V + y + k, 2)}")
    m, t = 12, 13
    p(f"v_mov_b32 {R(t)}, 0xff800000")
    for k in range(8): p(f"v_cndmask_b32 {R(V + k)}, {R(t)}, {R(V + k)}, {S(sMASK + 2 * k, 2)}")
    p(f"v_max3_f32 {R(m)}, {R(V)}, {R(V + 1)}, {R(V + 2)}")
    for k in (3, 5, 7): p(f"v_max3_f32 {R(m)}, {R(m)}, {R(V + k)}, {R(V + k + 1)}")
    p(f"v_max_f32 {R(m)}, {R(m)}, {R(V + 9)}")
    def across(op):
        for sw in ("v_permlane16_swap_b32", "v_permlane32_swap_b32"):
            p(f"v_mov_b32 {R(t)}, {R(m)}")
            p(f"{sw} {R(m)}, {R(t)}")
            p(f"{op} {R(m)}, {R(m)}, {R(t)}")
    across("v_max_f32")
    for k in range(10): p(f"v_sub_f32 {R(V + k)}, {R(V + k)}, {R(m)}")
    for k in range(10): p(f"v_exp_f32 {R(V + k)}, {R(V + k)}")
    p(f"v_add_f32 {R(m)}, {R(V)}, {R(V + 1)}")
    for k in range(2, 10): p(f"v_add_f32 {R(m)}, {R(m)}, {R(V + k)}")
    across("v_add_f32")
    p(f"v_rcp_f32 {R(m)}, {R(m)}")
    for k in range(10): p(f"v_mul_f32 {R(V + k)}, {R(V + k)}, {R(m)}")
    O = 16
    cvt(O, V); cvt(O + 1, V + 4); cvt(O + 2, V + 2); cvt(O + 3, V + 6); cvt(O + 4, V + 8)
    p(f"buffer_store_dwordx4 {R(O, 4)}, {R(vL16)}, {SRD}, {S(sPT)} offen sc1")
    p(f"buffer_store_dword {R(O + 4)}, {R(vPO)}, {SRD}, {S(sPT)} offen sc1")
    p("s_waitcnt vmcnt(0)")
    for i in flag_ins(vF, vFO, S(sFL)): p(i)
    p.label(skip)
    p(f"s_add_u32 {S(sKS)}, {S(sKS)}, {NP * 28672}")
    p(f"s_add_u32 {S(sPT)}, {S(sPT)}, {NP * PT_STRIDE}")
    p(f"s_add_u32 {S(sFL)}, {S(sFL)}, {NP * 256}")
    p(f"s_add_u32 {S(sMW)}, {S(sMW)}, {NP * MEM_STRIDE}")
    p(f"s_add_u32 {S(sS)}, {S(sS)}, {NP}")
    p(f"s_cmp_lt_u32 {S(sS)}, 64")
    p(f"s_cbranch_scc1 {LOOP}")
    p(f"s_branch {END}")

def role_UW(p, FAIL, END, NP=2):
    sH, sS, sMW, sOUT, sFL = 16, 17, 18, 19, 20
    MO, TA, G, IDX, vL16, vL8, lane, vG0, vG1, vO, vF, vFO, vt = 0, 28, 56, 64, 65, 66, 67, 68, 69, 70, 72, 74, 76
    p(f"s_lshr_b32 {S(sH)}, {S(sROLE)}, 1")
    p(f"s_and_b32 {S(sS)}, {S(sROLE)}, 1")
    lane_id(p, lane)
    p(f"v_lshlrev_b32 {R(vL16)}, 4, {R(lane)}")
    p(f"v_lshlrev_b32 {R(vL8)}, 3, {R(lane)}")
    flag_setup(p, vF, vFO, lane)
    chain.sparse_index(p, lane, IDX, vt, vt + 1)
    p(f"s_lshl_b32 s30, {S(sW)}, 10")
    p(f"v_add_u32 {R(vG0)}, s30, {R(vL16)}")
    p(f"s_add_u32 s30, {S(sW)}, 4"); p("s_min_u32 s30, s30, 6"); p("s_lshl_b32 s30, s30, 10")
    p(f"v_add_u32 {R(vG1)}, s30, {R(vL16)}")
    p(f"v_and_b32 {R(vt)}, 15, {R(lane)}"); p(f"v_lshlrev_b32 {R(vO)}, 3, {R(vt)}")
    p(f"v_bfe_u32 {R(vt)}, {R(lane)}, 4, 1"); p(f"v_lshl_add_u32 {R(vO)}, {R(vt)}, 7, {R(vO)}")
    p(f"v_lshrrev_b32 {R(vt)}, 5, {R(lane)}"); p(f"v_lshl_add_u32 {R(vO)}, {R(vt)}, 2, {R(vO)}")
    p(f"s_lshl_b32 s30, {S(sS)}, 4"); p(f"s_add_u32 s30, s30, {S(sH)}")
    p(f"s_lshl_b32 s31, s30, 2"); p(f"s_add_u32 s31, s31, {S(sW)}")
    p(f"s_mul_i32 s30, s31, 1792"); p(f"s_add_u32 {S(sOUT)}, s30, {OFF_UF}")
    p(f"s_lshl_b32 s31, s31, 3"); p(f"s_add_u32 {S(sFL)}, s31, {FL_UF}")
    p(f"s_mul_i32 s30, {S(sS)}, {MEM_STRIDE}"); p(f"s_add_u32 {S(sMW)}, s30, {OFF_MEMW}")
    p(f"s_add_u32 s23, {S(sH)}, 16")
    load_matrix(p, 23, vL16, vL8, vt, FAIL)
    wait_all_ln(p, vL8, vt, FAIL)
    LOOP = p.newlabel("uw"); p.label(LOOP)
    for r in range(28): p(f"v_mov_b32 {R(TA + r)}, 0")
    chain.poll(p, [(G, 4, vG0, 0), (G + 4, 4, vG1, 0)], sMW, vt, 28, FAIL, back=2)
    p("s_barrier")
    p(f"ds_write_b128 {R(vG0)}, {R(G, 4)}")
    p(f"ds_write_b128 {R(vG1)}, {R(G + 4, 4)}")
    p("s_waitcnt lgkmcnt(0)")
    p("s_barrier")
    for jc in range(7): p(f"ds_read_b128 {R(MO + 4 * jc, 4)}, {R(vL16)} offset:{1024 * jc}")
    for t in range(7):
        for jc in range(7):
            if t == 0: p(f"s_waitcnt lgkmcnt({6 - jc})")
            p(f"v_smfmac_f32_16x16x64_bf16 {R(TA + 4 * t, 4)}, {R(MO + 4 * jc, 4)}, {R(Wmap(t, jc), 8)}, {R(IDX)}")
    for t in range(7):
        a = TA + 4 * t
        p(f"v_permlane32_swap_b32 {R(a)}, {R(a + 2)}")
        p(f"v_permlane32_swap_b32 {R(a + 1)}, {R(a + 3)}")
        p(f"v_pk_add_f32 {R(a, 2)}, {R(a, 2)}, {R(a + 2, 2)}")
        p(f"v_cvt_pk_bf16_f32 {R(a)}, {R(a)}, {R(a + 1)}")
        p(f"buffer_store_dword {R(a)}, {R(vO)}, {SRD}, {S(sOUT)} offen offset:{256 * t} sc1")
    p("s_waitcnt vmcnt(0)")
    for i in flag_ins(vF, vFO, S(sFL)): p(i)
    p(f"s_add_u32 {S(sMW)}, {S(sMW)}, {NP * MEM_STRIDE}")
    p(f"s_add_u32 {S(sOUT)}, {S(sOUT)}, {NP * 16 * 7168}")
    p(f"s_add_u32 {S(sFL)}, {S(sFL)}, {NP * 512}")
    p(f"s_add_u32 {S(sS)}, {S(sS)}, {NP}")
    p(f"s_cmp_lt_u32 {S(sS)}, 64")
    p(f"s_cbranch_scc1 {LOOP}")
    p(f"s_branch {END}")

def divmod_const(p, src, d, q, r):
    m = (65536 + d - 1) // d
    assert all((x * m) >> 16 == x // d for x in range(256))
    p(f"s_mul_i32 {S(q)}, {S(src)}, {m}")
    p(f"s_lshr_b32 {S(q)}, {S(q)}, 16")
    p(f"s_mul_i32 s30, {S(q)}, {d}")
    p(f"s_sub_u32 {S(r)}, {S(src)}, s30")

LOG2E = math.log2(math.e)
def sigmoid_ins(p, dst, x, sC):
    p(f"v_mul_f32 {R(dst)}, {S(sC)}, {R(x)}")
    p(f"v_exp_f32 {R(dst)}, {R(dst)}")
    p(f"v_add_f32 {R(dst)}, 1.0, {R(dst)}")
    p(f"v_rcp_f32 {R(dst)}, {R(dst)}")
def unpack(p, lo, hi, src, sMSK):
    p(f"v_lshlrev_b32 {R(lo)}, 16, {R(src)}")
    p(f"v_and_b32 {R(hi)}, {S(sMSK)}, {R(src)}")

def role_GU(p, FAIL, END, NP=3):
    sB, sS, sSRC, sDST, sOUT, sFL, sFLP, sC, sMSK = 16, 17, 18, 19, 20, 21, 22, 23, 24
    SG, SU = 32, 36
    ACC, RING, vL16, vRd, vL8, lane, vF, vFO, vt, vS, vT, E = 0, 32, 56, 57, 58, 59, 60, 62, 64, 68, 72, 76
    LW = 57344
    def W(mat, tf, ks): return 256 + 4 * ((2 * mat + tf) * 14 + ks)
    divmod_const(p, sROLE, 14, sS, sB)
    make_srd(p, SG, K_G, 448 * 3584); make_srd(p, SU, K_U, 448 * 3584)
    lane_id(p, lane)
    p(f"v_lshlrev_b32 {R(vL16)}, 4, {R(lane)}")
    p(f"v_lshlrev_b32 {R(vL8)}, 3, {R(lane)}")
    flag_setup(p, vF, vFO, lane)
    a, b, c, n, g = 76, 77, 78, 79, 80
    p(f"v_lshrrev_b32 {R(a)}, 4, {R(lane)}")
    p(f"v_mul_u32_u24 {R(b)}, 3584, {R(a)}")
    p(f"v_and_b32 {R(a)}, 1, {R(a)}")
    p(f"v_lshlrev_b32 {R(a)}, 1, {R(a)}")
    p(f"v_and_b32 {R(c)}, 15, {R(lane)}")
    p(f"v_xor_b32 {R(a)}, {R(a)}, {R(c)}")
    for i in range(4):
        p(f"v_xor_b32 {R(c)}, {4 * i}, {R(a)}")
        p(f"v_lshl_add_u32 {R(vS + i)}, {R(c)}, 4, {R(b)}")
    chain.lane_fields(p, lane, n, g)
    p(f"v_lshrrev_b32 {R(a)}, 1, {R(g)}")
    p(f"v_lshlrev_b32 {R(a)}, 4, {R(a)}")
    p(f"v_and_b32 {R(g)}, 1, {R(g)}")
    p(f"v_lshlrev_b32 {R(g)}, 2, {R(g)}")
    p(f"v_and_b32 {R(b)}, 8, {R(n)}")
    p(f"v_or_b32 {R(g)}, {R(g)}, {R(b)}")
    p(f"v_bfe_u32 {R(b)}, {R(n)}, 2, 1")
    p(f"v_add3_u32 {R(a)}, {R(a)}, {R(g)}, {R(b)}")
    p(f"v_lshl_add_u32 {R(g)}, {R(b)}, 1, {R(g)}")
    p(f"v_lshlrev_b32 {R(a)}, 8, {R(a)}")
    p(f"v_and_b32 {R(b)}, 1, {R(n)}")
    p(f"v_lshl_add_u32 {R(a)}, {R(b)}, 3, {R(a)}")
    p(f"v_add_u32 {R(a)}, {LW}, {R(a)}")
    p(f"v_bfe_u32 {R(b)}, {R(n)}, 1, 1")
    p(f"s_lshl_b32 s30, {S(sW)}, 2")
    p(f"v_or_b32 {R(b)}, s30, {R(b)}")
    p(f"v_xor_b32 {R(b)}, {R(b)}, {R(g)}")
    p(f"v_lshl_add_u32 {R(vT)}, {R(b)}, 4, {R(a)}")
    p(f"v_xor_b32 {R(b)}, 2, {R(b)}")
    p(f"v_lshl_add_u32 {R(vT + 1)}, {R(b)}, 4, {R(a)}")
    p(f"v_add_u32 {R(vT + 2)}, 0x8000, {R(vT)}")
    p(f"v_add_u32 {R(vT + 3)}, 0x8000, {R(vT + 1)}")
    p(f"s_mul_i32 s20, {S(sW)}, {16 * 3584}")
    p(f"s_lshl_b32 s31, {S(sB)}, 8")
    p(f"s_add_u32 s20, s20, s31")
    p(f"s_lshl_b32 s21, {S(sW)}, 12")
    p(f"s_add_u32 s21, s21, {LW}")
    def wdma(c_):
        for mat in range(2):
            for i in range(4):
                p(f"s_add_u32 m0, s21, {(c_ & 1) * 32768 + mat * 16384 + i * 1024}")
                p(f"s_add_u32 s30, s20, {(64 * c_ + 4 * i) * 3584}")
                p(f"buffer_load_dwordx4 {R(vS + i)}, {S(SG if mat == 0 else SU, 4)}, s30 offen lds")
    wdma(0)
    for c_ in range(7):
        p("s_waitcnt vmcnt(0) lgkmcnt(0)")
        p("s_barrier")
        if c_ < 6: wdma(c_ + 1)
        for hf in range(2):
            for mat in range(2):
                for tf in range(2):
                    for half in range(2):
                        p(f"ds_read_b64_tr_b16 {R(W(mat, tf, 2 * c_ + hf) + 2 * half, 2)}, {R(vT + 2 * (c_ & 1) + tf)} offset:{mat * 16384 + hf * 8192 + half * 512}")
    wait_all_ln(p, vL8, vt, FAIL)
    stream_setup(p, sSRC, sDST, sS, vL16, vRd, sS)
    for gr in xnf_dma(vL16, sSRC, sDST):
        for i in gr: p(i)
    p(f"s_lshl_b32 s31, {S(sB)}, 2")
    p(f"s_add_u32 s31, s31, {S(sW)}")
    p(f"s_mul_i32 s30, {S(sS)}, 56")
    p(f"s_add_u32 s29, s30, s31")
    p(f"s_lshl_b32 s29, s29, 3")
    p(f"s_add_u32 {S(sFL)}, s29, {FL_H1}")
    p(f"s_lshl_b32 s30, s30, 1")
    p(f"s_add_u32 s30, s30, s31")
    p(f"s_lshl_b32 s30, s30, 10")
    p(f"s_add_u32 {S(sOUT)}, s30, {OFF_H1}")
    p(f"s_mov_b32 {S(sFLP)}, 0xf0000000")
    p(f"s_mov_b32 {S(sC)}, {fbits(-LOG2E)}")
    p(f"s_mov_b32 {S(sMSK)}, 0xffff0000")
    p("s_waitcnt vmcnt(0) lgkmcnt(0)")
    LOOP = p.newlabel("gu"); p.label(LOOP)
    p("s_waitcnt vmcnt(3)")
    p("s_barrier")
    next_seg(p, sS, sSRC, sDST, NP)
    fills = {k: gr for k, gr in enumerate(xnf_dma(vL16, sSRC, sDST))}
    fills[10] = ["s_waitcnt vmcnt(7)"] + flag_ins(vF, vFO, S(sFLP))
    def A(mat, tf, tau): return ACC + 4 * (4 * tau + 2 * mat + tf)
    def mf(ks, r):
        return [f"v_mfma_f32_16x16x32_bf16 {R(A(mat, tf, tau), 4)}, {R(W(mat, tf, ks), 4)}, {R(r + 4 * tau, 4)}, "
                f"{'0' if ks == 0 else R(A(mat, tf, tau), 4)}" for mat in range(2) for tf in range(2) for tau in range(2)]
    seg_stream(p, 4, mf, vRd, RING, fills)
    p(f"s_cmp_ge_u32 {S(sDST)}, 28672")
    p(f"s_cselect_b32 s31, 28672, 0")
    p(f"v_add_u32 {R(vRd)}, s31, {R(vL16)}")
    p(f"s_add_u32 s30, {S(sOUT)}, {56 * 1024}")
    for tau in range(2):
        gq, uq = A(0, 0, tau), A(1, 0, tau)
        for k in range(0, 8, 2):
            p(f"v_cvt_pk_bf16_f32 {R(E)}, {R(gq + k)}, {R(gq + k + 1)}")
            p(f"v_cvt_pk_bf16_f32 {R(E + 1)}, {R(uq + k)}, {R(uq + k + 1)}")
            unpack(p, gq + k, gq + k + 1, E, sMSK)
            unpack(p, uq + k, uq + k + 1, E + 1, sMSK)
        for k in range(8): p(f"v_mul_f32 {R(gq + k)}, {S(sC)}, {R(gq + k)}")
        for k in range(8): p(f"v_exp_f32 {R(gq + k)}, {R(gq + k)}")
        for k in range(8): p(f"v_add_f32 {R(gq + k)}, 1.0, {R(gq + k)}")
        for k in range(8): p(f"v_rcp_f32 {R(gq + k)}, {R(gq + k)}")
        for k in range(0, 8, 2):
            p(f"v_cvt_pk_bf16_f32 {R(E + (k >> 1))}, {R(gq + k)}, {R(gq + k + 1)}")
        for k in range(0, 8, 2):
            unpack(p, gq + k, gq + k + 1, E + (k >> 1), sMSK)
        for k in range(8): p(f"v_mul_f32 {R(gq + k)}, {R(gq + k)}, {R(uq + k)}")
        O = E + 4 + 4 * tau
        for k in range(0, 8, 2):
            p(f"v_cvt_pk_bf16_f32 {R(O + (k >> 1))}, {R(gq + k)}, {R(gq + k + 1)}")
        p(f"buffer_store_dwordx4 {R(O, 4)}, {R(vL16)}, {SRD}, {S(sOUT) if tau == 0 else 's30'} offen sc1")
    p(f"s_mov_b32 {S(sFLP)}, {S(sFL)}")
    p(f"s_add_u32 {S(sFL)}, {S(sFL)}, {NP * 56 * 8}")
    p(f"s_add_u32 {S(sOUT)}, {S(sOUT)}, {NP * 112 * 1024}")
    p(f"s_add_u32 {S(sS)}, {S(sS)}, {NP}")
    p(f"s_cmp_lt_u32 {S(sS)}, 64")
    p(f"s_cbranch_scc1 {LOOP}")
    p("s_waitcnt vmcnt(0)")
    for i in flag_ins(vF, vFO, S(sFLP)): p(i)
    p(f"s_branch {END}")

def role_GD(p, FAIL, END, NP=8):
    sCB, sS, sH, sOUT, sFL, sFH, sC, sMSK, sH2 = 16, 17, 18, 19, 20, 21, 22, 23, 24
    SD = 32
    ACC, RING, vL16, vL8, lane, vF, vFO, vt, vS, vT, vLW, vLR, vGO = 0, 56, 80, 81, 82, 84, 86, 88, 90, 92, 100, 101, 102
    NR = 6
    p(f"s_and_b32 {S(sCB)}, {S(sROLE)}, 3")
    p(f"s_lshr_b32 {S(sS)}, {S(sROLE)}, 2")
    make_srd(p, SD, K_D, 1792 * 896)
    lane_id(p, lane)
    p(f"v_lshlrev_b32 {R(vL16)}, 4, {R(lane)}")
    p(f"v_lshlrev_b32 {R(vL8)}, 3, {R(lane)}")
    flag_setup(p, vF, vFO, lane)
    a, b, c, n, g = 104, 105, 106, 107, 108
    p(f"v_lshrrev_b32 {R(a)}, 4, {R(lane)}")
    p(f"v_mul_u32_u24 {R(b)}, 896, {R(a)}")
    p(f"v_lshlrev_b32 {R(a)}, 1, {R(a)}")
    p(f"v_and_b32 {R(c)}, 15, {R(lane)}")
    p(f"v_xor_b32 {R(a)}, {R(a)}, {R(c)}")
    p(f"v_mov_b32 {R(g)}, 0x80000000")
    for i in range(2):
        p(f"v_xor_b32 {R(c)}, {8 * i}, {R(a)}")
        p(f"v_cmp_gt_u32 vcc, 14, {R(c)}")
        p(f"v_lshl_add_u32 {R(c)}, {R(c)}, 4, {R(b)}")
        p(f"v_cndmask_b32 {R(vS + i)}, {R(g)}, {R(c)}, vcc")
    chain.lane_fields(p, lane, n, g)
    p(f"v_lshrrev_b32 {R(c)}, 2, {R(n)}")
    p(f"v_lshl_add_u32 {R(a)}, {R(g)}, 2, {R(c)}")
    p(f"v_and_b32 {R(g)}, 7, {R(a)}")
    p(f"v_lshlrev_b32 {R(g)}, 1, {R(g)}")
    p(f"v_lshlrev_b32 {R(a)}, 8, {R(a)}")
    p(f"v_and_b32 {R(b)}, 1, {R(n)}")
    p(f"v_lshl_add_u32 {R(a)}, {R(b)}, 3, {R(a)}")
    p(f"s_lshl_b32 s21, {S(sW)}, 14")
    p(f"v_add_u32 {R(a)}, s21, {R(a)}")
    p(f"v_bfe_u32 {R(b)}, {R(n)}, 1, 1")
    p(f"v_xor_b32 {R(b)}, {R(b)}, {R(g)}")
    for ct in range(7):
        p(f"v_xor_b32 {R(c)}, {2 * ct}, {R(b)}")
        p(f"v_lshl_add_u32 {R(vT + ct)}, {R(c)}, 4, {R(a)}")
    p(f"s_mul_i32 s20, {S(sW)}, {448 * 896}")
    p(f"s_mul_i32 s31, {S(sCB)}, 224")
    p(f"s_add_u32 s20, s20, s31")
    def wdma(kk):
        for i in range(8):
            p(f"s_add_u32 m0, s21, {(kk & 1) * 8192 + i * 1024}")
            p(f"s_add_u32 s30, s20, {(32 * kk + 4 * i) * 896}")
            p(f"buffer_load_dwordx4 {R(vS + (i & 1))}, {S(SD, 4)}, s30 offen lds")
    wdma(0)
    for kk in range(14):
        if kk < 13:
            p("s_waitcnt lgkmcnt(0)")
            wdma(kk + 1)
        p(f"s_waitcnt vmcnt({8 if kk < 13 else 0})")
        for ct in range(7):
            for half in range(2):
                p(f"ds_read_b64_tr_b16 {R(Wks(ct, kk) + 2 * half, 2)}, {R(vT + ct)} offset:{(kk & 1) * 8192 + half * 4096}")
    p(f"s_mul_i32 s30, {S(sW)}, 14336")
    p(f"v_add_u32 {R(vLW)}, s30, {R(vL16)}")
    p(f"s_lshl_b32 s30, {S(sW)}, 10")
    p(f"v_add_u32 {R(vLR)}, s30, {R(vL16)}")
    p(f"s_mul_i32 s30, {S(sS)}, 56")
    p(f"s_mul_i32 s31, {S(sW)}, 14")
    p(f"s_add_u32 s29, s30, s31")
    p(f"s_lshl_b32 s29, s29, 3")
    p(f"s_add_u32 {S(sFH)}, s29, {FL_H1}")
    p(f"s_lshl_b32 s30, s30, 1")
    p(f"s_add_u32 s30, s30, s31")
    p(f"s_lshl_b32 s30, s30, 10")
    p(f"s_add_u32 {S(sH)}, s30, {OFF_H1}")
    p(f"s_mul_i32 s30, {S(sS)}, 28")
    p(f"s_mul_i32 s31, {S(sCB)}, 7")
    p(f"s_add_u32 s30, s30, s31")
    p(f"s_lshl_b32 s30, s30, 1")
    p(f"s_add_u32 s30, s30, {S(sW)}")
    p(f"s_lshl_b32 s30, s30, 9")
    p(f"s_add_u32 {S(sOUT)}, s30, {OFF_GF}")
    p(f"s_lshl_b32 s30, {S(sS)}, 2")
    p(f"s_add_u32 s30, s30, {S(sCB)}")
    p(f"s_lshl_b32 s30, s30, 2")
    p(f"s_add_u32 s30, s30, {S(sW)}")
    p(f"s_lshl_b32 s30, s30, 3")
    p(f"s_add_u32 {S(sFL)}, s30, {FL_GF}")
    p(f"s_mov_b32 {S(sC)}, {fbits(-LOG2E)}")
    p(f"s_mov_b32 {S(sMSK)}, 0xffff0000")
    p("s_waitcnt lgkmcnt(0)")
    p("s_barrier")
    LOOP = p.newlabel("gd"); p.label(LOOP)
    wait_flags(p, vL8, S(sFH), 14, vt, FAIL, sleep=4)
    seq = [(kk, tau) for kk in range(14) for tau in range(2)]
    def ld(i):
        kk, tau = seq[i]
        o = (tau * 56 + kk) * 1024
        p(f"s_add_u32 s30, {S(sH)}, {o & ~4095}")
        p(f"buffer_load_dwordx4 {R(RING + 4 * (i % NR), 4)}, {R(vL16)}, {SRD}, s30 offen offset:{o & 4095} sc1")
    for i in range(NR): ld(i)
    for i, (kk, tau) in enumerate(seq):
        p(f"s_waitcnt vmcnt({min(NR - 1, len(seq) - 1 - i)})")
        for ct in range(7):
            a_ = ACC + 8 * ct + 4 * tau
            p(f"v_mfma_f32_16x16x32_bf16 {R(a_, 4)}, {R(Wks(ct, kk), 4)}, {R(RING + 4 * (i % NR), 4)}, {'0' if kk == 0 else R(a_, 4)}")
        if i + NR < len(seq): ld(i + NR)
    p("s_barrier")
    for u in range(14): p(f"ds_write_b128 {R(vLW)}, {R(ACC + 4 * u, 4)} offset:{u * 1024}")
    p("s_waitcnt lgkmcnt(0)")
    p("s_barrier")
    for i in range(4):
        for w2 in range(4):
            p(f"ds_read_b128 {R(16 * i + 4 * w2, 4)}, {R(vLR)} offset:{w2 * 14336 + i * 4096}")
    for i in range(4):
        V = 16 * i
        p(f"s_waitcnt lgkmcnt({12 - 4 * i})")
        for (x, y) in ((0, 4), (8, 12), (0, 8)):
            for k in (0, 2): p(f"v_pk_add_f32 {R(V + x + k, 2)}, {R(V + x + k, 2)}, {R(V + y + k, 2)}")
        for k in (0, 2):
            p(f"v_cvt_pk_bf16_f32 {R(V + 4)}, {R(V + k)}, {R(V + k + 1)}")
            unpack(p, V + k, V + k + 1, V + 4, sMSK)
        for k in range(4): p(f"v_mul_f32 {R(V + 4 + k)}, {S(sC)}, {R(V + k)}")
        for k in range(4): p(f"v_exp_f32 {R(V + 4 + k)}, {R(V + 4 + k)}")
        for k in range(4): p(f"v_add_f32 {R(V + 4 + k)}, 1.0, {R(V + 4 + k)}")
        for k in range(4): p(f"v_rcp_f32 {R(V + 4 + k)}, {R(V + 4 + k)}")
        for k in range(4): p(f"v_mul_f32 {R(V + k)}, {R(V + k)}, {R(V + 4 + k)}")
        p(f"v_cvt_pk_bf16_f32 {R(V + 8)}, {R(V)}, {R(V + 1)}")
        p(f"v_cvt_pk_bf16_f32 {R(V + 9)}, {R(V + 2)}, {R(V + 3)}")
        if i < 3:
            p(f"s_add_u32 s30, {S(sOUT)}, {i * 2048}")
        else:
            p(f"s_add_u32 s31, {S(sOUT)}, {i * 2048}")
            p(f"s_cmp_lt_u32 {S(sW)}, 2")
            p(f"s_cselect_b32 s30, s31, 0xf0000000")
        p(f"buffer_store_dwordx2 {R(V + 8, 2)}, {R(vL8)}, {SRD}, s30 offen sc1")
    p("s_waitcnt vmcnt(0)")
    for i in flag_ins(vF, vFO, S(sFL)): p(i)
    p(f"s_add_u32 {S(sFH)}, {S(sFH)}, {NP * 56 * 8}")
    p(f"s_add_u32 {S(sH)}, {S(sH)}, {NP * 112 * 1024}")
    p(f"s_add_u32 {S(sOUT)}, {S(sOUT)}, {NP * 56 * 512}")
    p(f"s_add_u32 {S(sFL)}, {S(sFL)}, {NP * 128}")
    p(f"s_add_u32 {S(sS)}, {S(sS)}, {NP}")
    p(f"s_cmp_lt_u32 {S(sS)}, 64")
    p(f"s_cbranch_scc1 {LOOP}")
    p(f"s_branch {END}")

def role_F(p, FAIL, END, NP=3):
    sJ, sS, sVX, sPT, sUF, sG, sX, sFV, sFG, sFP, sFU, sMSK, sLB = 16, 17, 18, 19, 20, 21, 22, 23, 24, 25, 26, 27, 44
    SX, SO = 32, 36
    Z, P, OA, G, XI = 0, 40, 80, 96, 98
    vL16, vL8, lane, vt, vLW, vLR, vXO, vUO = 100, 101, 102, 104, 106, 107, 108, 109
    divmod_const(p, sROLE, 14, sS, sJ)
    make_srd(p, SX, K_X, 2048 * 896); make_srd(p, SO, K_OUT, 2048 * 896)
    lane_id(p, lane)
    p(f"v_lshlrev_b32 {R(vL16)}, 4, {R(lane)}")
    p(f"v_lshlrev_b32 {R(vL8)}, 3, {R(lane)}")
    a, b, n, g = 110, 111, 112, 113
    chain.lane_fields(p, lane, n, g)
    p(f"v_lshrrev_b32 {R(a)}, 3, {R(n)}")
    p(f"v_lshlrev_b32 {R(a)}, 4, {R(a)}")
    p(f"v_bfe_u32 {R(b)}, {R(n)}, 1, 1")
    p(f"v_lshl_add_u32 {R(a)}, {R(b)}, 3, {R(a)}")
    p(f"v_bfe_u32 {R(b)}, {R(n)}, 2, 1")
    p(f"v_lshl_add_u32 {R(a)}, {R(b)}, 2, {R(a)}")
    p(f"v_and_b32 {R(b)}, 1, {R(n)}")
    p(f"v_add_u32 {R(a)}, {R(a)}, {R(b)}")
    p(f"s_and_b32 s31, {S(sW)}, 1")
    p(f"s_lshl_b32 s30, s31, 1")
    p(f"v_add_u32 {R(a)}, s30, {R(a)}")
    p(f"v_mul_u32_u24 {R(a)}, 896, {R(a)}")
    p(f"v_lshl_add_u32 {R(vXO)}, {R(g)}, 3, {R(a)}")
    p(f"v_lshrrev_b32 {R(a)}, 1, {R(g)}")
    p(f"v_mul_u32_u24 {R(a)}, 7168, {R(a)}")
    p(f"v_and_b32 {R(b)}, 1, {R(g)}")
    p(f"v_lshl_add_u32 {R(a)}, {R(b)}, 7, {R(a)}")
    p(f"v_lshl_add_u32 {R(vUO)}, {R(n)}, 3, {R(a)}")
    p(f"s_lshr_b32 s29, {S(sW)}, 1")
    p(f"s_lshl_b32 s30, {S(sJ)}, 1")
    p(f"s_add_u32 s29, s29, s30")
    p(f"s_mul_i32 s30, {S(sS)}, {32 * 896}")
    p(f"s_lshl_b32 s28, s29, 5")
    p(f"s_add_u32 {S(sX)}, s30, s28")
    p(f"s_mul_i32 s30, {S(sS)}, 28")
    p(f"s_add_u32 s30, s30, s29")
    p(f"s_lshl_b32 s30, s30, 1")
    p(f"s_add_u32 s30, s30, s31")
    p(f"s_lshl_b32 s30, s30, 9")
    p(f"s_add_u32 {S(sG)}, s30, {OFF_GF}")
    p(f"s_lshl_b32 s30, {S(sS)}, 4")
    p(f"s_lshl_b32 s31, {S(sW)}, 2")
    p(f"s_add_u32 s30, s30, s31")
    p(f"s_lshl_b32 s31, s30, 5")
    p(f"s_add_u32 {S(sFV)}, s31, {FL_VX}")
    p(f"s_add_u32 {S(sFU)}, s31, {FL_UF}")
    p(f"s_lshl_b32 s31, s30, 4")
    p(f"s_add_u32 {S(sFP)}, s31, {FL_PT}")
    p(f"s_mul_i32 s30, s30, 28")
    p(f"s_lshl_b32 s31, {S(sJ)}, 1")
    p(f"s_add_u32 s30, s30, s31")
    p(f"s_lshl_b32 s31, s30, 8")
    p(f"s_add_u32 {S(sUF)}, s31, {OFF_UF}")
    p(f"s_lshl_b32 s30, s30, 10")
    p(f"s_add_u32 {S(sVX)}, s30, {OFF_VX}")
    p(f"s_mul_i32 s30, {S(sS)}, {PT_STRIDE}")
    p(f"s_add_u32 {S(sPT)}, s30, {OFF_PT}")
    p(f"s_lshl_b32 s30, {S(sS)}, 7")
    p(f"s_add_u32 {S(sFG)}, s30, {FL_GF}")
    p(f"s_mov_b32 {S(sMSK)}, 0xffff0000")
    p(f"s_mov_b32 {S(sLB)}, 0")
    p("s_barrier")
    LOOP = p.newlabel("f"); p.label(LOOP)
    p(f"s_lshl_b32 s30, {S(sW)}, 12")
    p(f"s_add_u32 s30, s30, {S(sLB)}")
    p(f"v_add_u32 {R(vLW)}, s30, {R(vL16)}")
    p(f"s_lshl_b32 s30, {S(sW)}, 10")
    p(f"s_add_u32 s30, s30, {S(sLB)}")
    p(f"v_add_u32 {R(vLR)}, s30, {R(vL16)}")
    wait_flags(p, vL8, S(sFV), 16, vt, FAIL, sleep=8)
    for hh in range(4):
        p(f"s_add_u32 s30, {S(sVX)}, {hh * 28672}")
        for ct in range(2):
            p(f"buffer_load_dwordx4 {R(Z + 20 * ct + 4 * hh, 4)}, {R(vL16)}, {SRD}, s30 offen offset:{1024 * ct} sc1")
    p(f"buffer_load_dwordx2 {R(XI, 2)}, {R(vXO)}, {S(SX, 4)}, {S(sX)} offen")
    wait_flags(p, vL8, S(sFG), 16, vt, FAIL, sleep=8)
    p(f"buffer_load_dwordx2 {R(G, 2)}, {R(vL8)}, {SRD}, {S(sG)} offen sc1")
    wait_flags(p, vL8, S(sFU), 16, vt, FAIL, sleep=2)
    p(f"s_add_u32 s30, {S(sUF)}, {2 * 7168}")
    for ct in range(2):
        for pr in range(2):
            p(f"buffer_load_dwordx2 {R(Z + 20 * ct + 16 + 2 * pr, 2)}, {R(vUO)}, {SRD}, {S(sUF) if pr == 0 else 's30'} offen offset:{256 * ct} sc1")
    wait_flags(p, vL8, S(sFP), 8, vt, FAIL, sleep=2)
    p(f"s_lshl_b32 s30, {S(sW)}, 13")
    p(f"s_add_u32 s30, s30, {S(sPT)}")
    p(f"s_add_u32 s31, s30, 4096")
    for hh in range(4):
        for tau in range(2):
            p(f"buffer_load_dwordx4 {R(P + 20 * tau + 4 * hh, 4)}, {R(vL16)}, {SRD}, {'s30' if hh < 2 else 's31'} offen offset:{((hh & 1) * 2 + tau) * 1024} sc1")
    p(f"s_lshl_b32 s30, {S(sW)}, 11")
    p(f"s_add_u32 s30, s30, {S(sPT)}")
    p(f"s_add_u32 s30, s30, 32768")
    for tau in range(2):
        p(f"buffer_load_dwordx4 {R(P + 20 * tau + 16, 4)}, {R(vL16)}, {SRD}, s30 offen offset:{tau * 1024} sc1")
    for k in range(5):
        p(f"s_waitcnt vmcnt({8 - 2 * k if k < 4 else 0})")
        for ct in range(2):
            for tau in range(2):
                o = OA + 4 * (2 * ct + tau)
                p(f"v_mfma_f32_16x16x32_bf16 {R(o, 4)}, {R(Z + 20 * ct + 4 * k, 4)}, {R(P + 20 * tau + 4 * k, 4)}, {'0' if k == 0 else R(o, 4)}")
    for u in range(4): p(f"ds_write_b128 {R(vLW)}, {R(OA + 4 * u, 4)} offset:{u * 1024}")
    p("s_waitcnt lgkmcnt(0)")
    p("s_barrier")
    V = OA
    for w2 in range(4): p(f"ds_read_b128 {R(V + 4 * w2, 4)}, {R(vLR)} offset:{w2 * 4096}")
    p("s_waitcnt lgkmcnt(0)")
    for (x, y) in ((0, 4), (8, 12), (0, 8)):
        for k in (0, 2): p(f"v_pk_add_f32 {R(V + x + k, 2)}, {R(V + x + k, 2)}, {R(V + y + k, 2)}")
    for k in (0, 2):
        p(f"v_cvt_pk_bf16_f32 {R(V + 4)}, {R(V + k)}, {R(V + k + 1)}")
        unpack(p, V + k, V + k + 1, V + 4, sMSK)
        unpack(p, V + 6, V + 7, G + (k >> 1), sMSK)
        p(f"v_pk_mul_f32 {R(V + k, 2)}, {R(V + k, 2)}, {R(V + 6, 2)}")
        p(f"v_cvt_pk_bf16_f32 {R(V + 4)}, {R(V + k)}, {R(V + k + 1)}")
        unpack(p, V + k, V + k + 1, V + 4, sMSK)
        unpack(p, V + 6, V + 7, XI + (k >> 1), sMSK)
        p(f"v_pk_add_f32 {R(V + k, 2)}, {R(V + k, 2)}, {R(V + 6, 2)}")
        p(f"v_cvt_pk_bf16_f32 {R(V + 8 + (k >> 1))}, {R(V + k)}, {R(V + k + 1)}")
    p(f"buffer_store_dwordx2 {R(V + 8, 2)}, {R(vXO)}, {S(SO, 4)}, {S(sX)} offen")
    p(f"s_xor_b32 {S(sLB)}, {S(sLB)}, 16384")
    p(f"s_add_u32 {S(sVX)}, {S(sVX)}, {NP * 16 * 28672}")
    p(f"s_add_u32 {S(sPT)}, {S(sPT)}, {NP * PT_STRIDE}")
    p(f"s_add_u32 {S(sUF)}, {S(sUF)}, {NP * 16 * 7168}")
    p(f"s_add_u32 {S(sG)}, {S(sG)}, {NP * 56 * 512}")
    p(f"s_add_u32 {S(sX)}, {S(sX)}, {NP * 32 * 896}")
    p(f"s_add_u32 {S(sFV)}, {S(sFV)}, {NP * 512}")
    p(f"s_add_u32 {S(sFG)}, {S(sFG)}, {NP * 128}")
    p(f"s_add_u32 {S(sFP)}, {S(sFP)}, {NP * 256}")
    p(f"s_add_u32 {S(sFU)}, {S(sFU)}, {NP * 512}")
    p(f"s_add_u32 {S(sS)}, {S(sS)}, {NP}")
    p(f"s_cmp_lt_u32 {S(sS)}, 64")
    p(f"s_cbranch_scc1 {LOOP}")
    p(f"s_branch {END}")
```

```python
import sys
from common import *
import phase0
NAME = "recurrent_scan__memory_aug_recurrent_mem_tr__glu_gated_glu__prompt_kernel"
LDS = 163840
HEAD = open("header.txt").read()
def wrap(body, lds=LDS):
    return HEAD.replace("@LDS@", str(lds)) + f""".amdgcn_target "amdgcn-amd-amdhsa--gfx950"
.text
.globl {NAME}
.p2align 8
.type {NAME},@function
{NAME}:
""" + "\n".join(body) + f"""
.section .rodata,"a"
.p2align 6
.amdhsa_kernel {NAME}
  .amdhsa_next_free_vgpr 512
  .amdhsa_next_free_sgpr 102
  .amdhsa_accum_offset 256
  .amdhsa_group_segment_fixed_size 0
  .amdhsa_kernarg_size 112
  .amdhsa_user_sgpr_count 2
  .amdhsa_user_sgpr_kernarg_segment_ptr 1
  .amdhsa_system_sgpr_workgroup_id_x 1
  .amdhsa_float_denorm_mode_32 3
.end_amdhsa_kernel
"""
def build(roles=("p0",), **opt):
    p = Prog()
    END, FAIL, P0D = "L_end", "L_fail", "L_p0done"
    RT["on"] = bool(opt.get("lst"))
    lstamp_init(p); lstamp(p, 0)
    if opt.get("rt"): p("s_memrealtime s[60:61]")
    prologue(p, END, FAIL)
    if opt.get("rt"):
        p(f"s_lshl_b32 s42, {S(sXCC)}, 5"); p(f"s_add_u32 s42, s42, {S(sRANK)}"); p("s_lshl_b32 s42, s42, 2")
        p(f"s_add_u32 s42, s42, {S(sW)}"); p("s_lshl_b32 s42, s42, 6"); p(f"s_add_u32 s42, s42, {OFF_DBG}")
        p("s_memrealtime s[62:63]"); p("s_waitcnt lgkmcnt(0)")
        p("v_mov_b32 v114, s60"); p("v_mov_b32 v115, 0"); p("v_mov_b32 v116, s62")
        p(f"buffer_store_dword v114, v115, {SRD}, s42 offen")
        p(f"buffer_store_dword v116, v115, {SRD}, s42 offen offset:24")
        p("s_waitcnt vmcnt(0)")
    lstamp(p, 1)
    phase0.OPT.clear(); phase0.OPT.update(opt)
    if "p0" in roles:
        phase0.phase0(p, FAIL, P0D)
    else:
        get_epoch(p, FAIL, 4)
    p.label(P0D)
    if len(roles) > 1 or "p0" not in roles:
        import roles as R_
        R_.dispatch(p, roles, END, FAIL, opt)
    p("s_endpgm")
    p.label(FAIL)
    p("s_waitcnt vmcnt(0) lgkmcnt(0)")
    p(f"s_load_dwordx2 s[14:15], s[0:1], {K_DBG}")
    p("v_mov_b32 v0, 8"); p("v_mov_b32 v1, 1"); p("s_mov_b64 exec, 1")
    p("s_waitcnt lgkmcnt(0)")
    p("global_atomic_add v0, v1, s[14:15] sc1")
    p.label(END)
    p("s_endpgm")
    out, st = finalize(p, "kernel")
    return wrap(out), st
if __name__ == "__main__":
    asm, st = build(("p0", "X", "Y", "VW", "TW", "UW", "GU", "GD", "F"))
    print(st)
    open("out.s", "w").write(asm)
```
